```python
import torch

def _softmax(x, axis=-1):
    return torch.softmax(x, dim=axis)
def _gelu(x):
    return torch.nn.functional.gelu(x, approximate="tanh")
def _silu(x):
    return torch.nn.functional.silu(x)
def _sigmoid(x):
    return torch.sigmoid(x)
def _layernorm(x, axis=-1, eps=1e-5):
    m = x.mean(dim=axis, keepdim=True)
    v = x.var(dim=axis, keepdim=True, unbiased=False)
    return (x - m) / torch.sqrt(v + eps)
def _scatter_add(tgt, idx, src, axis=0):
    return tgt.clone().index_add_(axis, idx, src)
def _segment_sum(src, seg, n):
    out = torch.zeros((n,) + src.shape[1:], dtype=src.dtype)
    return out.index_add_(0, seg, src)
def _pad(x, pw):
    flat = tuple(v for pair in reversed(pw) for v in pair)
    return torch.nn.functional.pad(x, flat)

kernel_name = 'recurrent_scan__compressed_kv_cla__mixer_channel_mlp__decode'

def setup_inputs():

    _w = (lambda a: (lambda t: t.to(torch.bfloat16) if t.is_floating_point() else t)(torch.as_tensor(a)))
    def _A_setup():
        B, H, Sq, Sk, D, M = 1, 32, 1, 8192, 128, 512
        Dc = 4 * D
        return {
            "x": _w((lambda *s: torch.randn(*s, dtype=torch.bfloat16) * 0.1)(B, Sq, M)),
            "c_kv": _w((lambda *s: torch.randn(*s, dtype=torch.bfloat16) * 3.2)(B, Sk, Dc)),
            "w_q": _w((lambda *s: torch.randn(*s, dtype=torch.bfloat16) * 0.8)(M, H, D) * (M ** -0.5)),
            "w_uk": _w((lambda *s: torch.randn(*s, dtype=torch.bfloat16) * 0.8)(Dc, H, D) * (Dc ** -0.5)),
            "w_uv": _w((lambda *s: torch.randn(*s, dtype=torch.bfloat16) * 3.2)(Dc, H, D) * (Dc ** -0.5)),
            "w_o": _w((lambda *s: torch.randn(*s, dtype=torch.bfloat16) * 3.2)(H, D, M) * ((H * D) ** -0.5)),
        }
    _A_in = _A_setup()

    def _B_setup():
        B, S, D, F = 1, 1, 512, 1376
        return {
            "x": _w((lambda *s: torch.randn(*s, dtype=torch.bfloat16) * 0.1)(B, S, D)),
            "w1": _w((lambda *s: torch.randn(*s, dtype=torch.bfloat16) * 3.2)(D, F) * (D ** -0.5)),
            "b1": _w((lambda *s: torch.randn(*s, dtype=torch.bfloat16) * 3.2)(F)),
            "w2": _w((lambda *s: torch.randn(*s, dtype=torch.bfloat16) * 3.2)(F, D) * (F ** -0.5)),
            "b2": _w((lambda *s: torch.randn(*s, dtype=torch.bfloat16) * 3.2)(D)),
        }
    _B_in = _B_setup()

    return {
        "A_x": _A_in["x"],
        "A_c_kv": _A_in["c_kv"],
        "A_w_q": _A_in["w_q"],
        "A_w_uk": _A_in["w_uk"],
        "A_w_uv": _A_in["w_uv"],
        "A_w_o": _A_in["w_o"],
        "B_x": _B_in["x"],
        "B_w1": _B_in["w1"],
        "B_b1": _B_in["b1"],
        "B_w2": _B_in["w2"],
        "B_b2": _B_in["b2"],
    }

def reference(A_x, A_c_kv, A_w_q, A_w_uk, A_w_uv, A_w_o, B_x, B_w1, B_b1, B_w2, B_b2):
    def _A_ref(x, c_kv, w_q, w_uk, w_uv, w_o):
        B, Sq, M = x.shape[0], x.shape[1], x.shape[2]
        Sk = c_kv.shape[1]
        H, D = w_q.shape[1], w_q.shape[2]
        q = torch.einsum("bqm,mhd->bhqd", x, w_q)
        k = torch.einsum("bkc,chd->bhkd", c_kv, w_uk)
        v = torch.einsum("bkc,chd->bhkd", c_kv, w_uv)
        scores = torch.einsum("bhqd,bhkd->bhqk", q, k) * (D ** -0.5)
        off = Sk - Sq
        qi = torch.arange(Sq)[:, None]
        kj = torch.arange(Sk)[None, :]
        cmask = kj <= (qi + off)
        scores = torch.where(cmask[None, None], scores, -1e9)
        p = _softmax(scores, axis=-1)
        ctx = torch.einsum("bhqk,bhkd->bhqd", p, v)
        return torch.einsum("bhqd,hdm->bqm", ctx, w_o)

    def _B_ref(x, w1, b1, w2, b2):
        y = _layernorm(x, axis=-1)
        h = _gelu(torch.einsum("bsd,df->bsf", y, w1) + b1)
        return torch.einsum("bsf,fd->bsd", h, w2) + b2

    x = A_x
    xn = _layernorm(x, axis=-1)
    s = _A_ref(xn, A_c_kv, A_w_q, A_w_uk, A_w_uv, A_w_o)
    g = _silu(_B_ref(xn, B_w1, B_b1, B_w2, B_b2))
    return x + s * g
```

```python
KN = "recurrent_scan__compressed_kv_cla__mixer_channel_mlp__decode_kernel"
STAMP_OFF = 200 << 20

class Asm:
    def __init__(self):
        self.lines = []
    def __call__(self, s=""):
        for l in s.split("\n"):
            self.lines.append(l if (l.strip().endswith(":") or l.startswith(".") or l.startswith(";")) else "    " + l.strip())
    def text(self):
        return "\n".join(self.lines) + "\n"

def header(a, launches):
    for l in launches:
        a("; @launch " + l)
    a('.amdgcn_target "amdgcn-amd-amdhsa--gfx950"')
    a(".text")

def kernel_begin(a, name):
    a(".globl %s" % name)
    a(".p2align 8")
    a(".type %s,@function" % name)
    a("%s:" % name)

def descriptors(a, kernels):
    a('.section .rodata,"a"')
    for name, vgpr, sgpr, accum in kernels:
        a(".p2align 6")
        a(".amdhsa_kernel %s" % name)
        a.lines += ["  .amdhsa_next_free_vgpr %d" % vgpr,
                    "  .amdhsa_next_free_sgpr %d" % sgpr,
                    "  .amdhsa_accum_offset %d" % accum,
                    "  .amdhsa_group_segment_fixed_size 0",
                    "  .amdhsa_kernarg_size 112",
                    "  .amdhsa_user_sgpr_count 2",
                    "  .amdhsa_user_sgpr_kernarg_segment_ptr 1",
                    "  .amdhsa_system_sgpr_workgroup_id_x 1"]
        a(".end_amdhsa_kernel")

def stamp(a, slot, base=64):
    a("s_memrealtime s[%d:%d]" % (base + 2 * slot, base + 2 * slot + 1))

def stamps_out(a, nslots, wsreg, wgreg, vtmp, base=64, lab="L_st"):
    a("s_waitcnt lgkmcnt(0)")
    a("v_cmp_eq_u32 vcc, 0, v0")
    a("s_and_saveexec_b64 s[62:63], vcc")
    a("s_cbranch_execz %s" % lab)
    a("s_lshl_b32 s61, %s, 7" % wgreg)
    a("s_add_u32 s61, s61, 0x%x" % STAMP_OFF)
    a("v_mov_b32 v%d, s61" % (vtmp + 2))
    for s in range(nslots):
        a("v_mov_b32 v%d, s%d" % (vtmp, base + 2 * s))
        a("v_mov_b32 v%d, s%d" % (vtmp + 1, base + 2 * s + 1))
        a("global_store_dwordx2 v%d, v[%d:%d], %s offset:%d" % (vtmp + 2, vtmp, vtmp + 1, wsreg, 8 * s))
        a("s_nop 1")
    a("%s:" % lab)
    a("s_mov_b64 exec, s[62:63]")
```

```python
from asmlib import *
import struct
def f2u(x): return struct.unpack("<I", struct.pack("<f", x))[0]
XN, Y_, Q_, QA, SC, O_, CTX, S_, H1, T_ = 0, 0x1000, 0x2000, 0x8000, 0x100000, 0x20000, 0x40000, 0x48000, 0x4A000, 0x4C000
ARG = dict(x=0, ckv=8, wq=16, wuk=24, wuv=32, wo=40, w1=56, b1=64, w2=72, b2=80, out=88, dbg=96, ws=104)

def wave_sum(a, v, t):
    for sh in ("row_shr:1", "row_shr:2", "row_shr:4", "row_shr:8"):
        pass
    for m in ("quad_perm:[1,0,3,2]", "quad_perm:[2,3,0,1]", "row_half_mirror", "row_mirror"):
        a("s_nop 1")
        a("v_add_f32_dpp v%d, v%d, v%d %s row_mask:0xf bank_mask:0xf" % (v, v, v, m))
    a("v_mov_b32 v%d, v%d\ns_nop 1\nv_permlane16_swap_b32 v%d, v%d\ns_nop 1\nv_add_f32 v%d, v%d, v%d" % (t, v, t, v, v, v, t))
    a("v_mov_b32 v%d, v%d\ns_nop 1\nv_permlane32_swap_b32 v%d, v%d\ns_nop 1\nv_add_f32 v%d, v%d, v%d" % (t, v, t, v, v, v, t))

def rbf(a, v):
    a("v_cvt_pk_bf16_f32 v%d, v%d, v%d\nv_lshlrev_b32 v%d, 16, v%d" % (v, v, v, v, v))

def layernorm8(a, r, t):
    a("v_add_f32 v%d, v%d, v%d" % (t, r, r + 1))
    for i in range(2, 8): a("v_add_f32 v%d, v%d, v%d" % (t, t, r + i))
    wave_sum(a, t, t + 1)
    a("v_mul_f32 v%d, 0x%x, v%d" % (t, f2u(1 / 512), t))
    a("v_mov_b32 v%d, 0" % (t + 2))
    for i in range(8):
        a("v_sub_f32 v%d, v%d, v%d\nv_fmac_f32 v%d, v%d, v%d" % (t + 1, r + i, t, t + 2, t + 1, t + 1))
    wave_sum(a, t + 2, t + 1)
    a("v_mul_f32 v%d, 0x%x, v%d" % (t + 2, f2u(1 / 512), t + 2))
    rbf(a, t); rbf(a, t + 2)
    a("v_add_f32 v%d, 0x%x, v%d" % (t + 2, f2u(1e-5), t + 2)); rbf(a, t + 2)
    a("v_sqrt_f32 v%d, v%d\ns_nop 0" % (t + 2, t + 2)); rbf(a, t + 2)
    a("v_rcp_f32 v%d, v%d\ns_nop 0" % (t + 2, t + 2))
    for i in range(8):
        a("v_sub_f32 v%d, v%d, v%d" % (r + i, r + i, t)); rbf(a, r + i)
        a("v_mul_f32 v%d, v%d, v%d" % (r + i, r + i, t + 2)); rbf(a, r + i)

def k_ln(a):
    kernel_begin(a, "ln_kernel")
    a("s_cmp_ge_u32 s2, 1\ns_cbranch_scc1 ln_end")
    a("s_load_dwordx2 s[4:5], s[0:1], 0\ns_load_dwordx2 s[6:7], s[0:1], 104")
    a("v_lshlrev_b32 v1, 4, v0\nv_lshlrev_b32 v2, 5, v0\ns_waitcnt lgkmcnt(0)")
    a("global_load_dwordx4 v[4:7], v1, s[4:5]\ns_waitcnt vmcnt(0)")
    for i in range(4):
        a("v_lshlrev_b32 v%d, 16, v%d\nv_and_b32 v%d, 0xffff0000, v%d" % (8 + 2 * i, 4 + i, 9 + 2 * i, 4 + i))
    layernorm8(a, 8, 16)
    a("global_store_dwordx4 v2, v[8:11], s[6:7]\nglobal_store_dwordx4 v2, v[12:15], s[6:7] offset:16\ns_waitcnt vmcnt(0)")
    layernorm8(a, 8, 16)
    a("v_add_u32 v2, 0x%x, v2" % Y_)
    a("global_store_dwordx4 v2, v[8:11], s[6:7]\nglobal_store_dwordx4 v2, v[12:15], s[6:7] offset:16\ns_waitcnt vmcnt(0)")
    a("ln_end:\ns_endpgm")

def k_dot(a, name, N, sh, K, aoff, ahi, alo, ak, barg, bhi, blo, bk, ooff, epi=None):
    kernel_begin(a, name)
    nwg = (N + 255) // 256
    a("s_cmp_ge_u32 s2, %d\ns_cbranch_scc1 %s_end" % (nwg, name))
    a("s_load_dwordx2 s[4:5], s[0:1], %d\ns_load_dwordx2 s[6:7], s[0:1], 104\ns_load_dwordx2 s[10:11], s[0:1], 64" % barg)
    a("s_lshl_b32 s3, s2, 8\nv_add_u32 v1, s3, v0")
    a("v_lshrrev_b32 v2, %d, v1\nv_and_b32 v3, 0x%x, v1" % (sh, (1 << sh) - 1))
    a("s_mov_b32 s12, %d\ns_mov_b32 s13, %d\ns_mov_b32 s14, %d\ns_mov_b32 s15, %d" % (ahi, alo, bhi, blo))
    a("v_mul_lo_u32 v4, v2, s12\nv_mul_lo_u32 v5, v3, s13\nv_add_u32 v4, v4, v5\nv_add_u32 v4, 0x%x, v4" % aoff)
    a("v_mul_lo_u32 v6, v2, s14\nv_mul_lo_u32 v5, v3, s15\nv_add_u32 v6, v6, v5")
    a("v_lshlrev_b32 v9, 2, v1\nv_add_u32 v9, 0x%x, v9\nv_lshlrev_b32 v10, 1, v1" % ooff)
    a("v_mov_b32 v8, 0\ns_mov_b32 s8, 0")
    a("s_mov_b32 s16, %d\nv_cmp_gt_u32 vcc, s16, v1\ns_and_b64 exec, exec, vcc\ns_cbranch_execz %s_end" % (N, name))
    a("s_waitcnt lgkmcnt(0)")
    a("%s_loop:" % name)
    U = 16
    for u in range(U):
        a("global_load_dword v%d, v4, s[6:7]\nglobal_load_ushort v%d, v6, s[4:5]" % (16 + u, 32 + u))
        a("v_add_u32 v4, %d, v4\nv_add_u32 v6, %d, v6" % (ak, bk))
    a("s_waitcnt vmcnt(0)")
    for u in range(U):
        a("v_lshlrev_b32 v%d, 16, v%d\nv_fmac_f32 v8, v%d, v%d" % (32 + u, 32 + u, 16 + u, 32 + u))
    a("s_add_u32 s8, s8, %d\ns_cmp_lt_u32 s8, %d\ns_cbranch_scc1 %s_loop" % (U, K, name))
    if epi == "rbf": rbf(a, 8)
    if epi == "gelu":
        rbf(a, 8)
        a("global_load_ushort v11, v10, s[10:11]\ns_waitcnt vmcnt(0)\nv_lshlrev_b32 v11, 16, v11\nv_add_f32 v8, v8, v11"); rbf(a, 8)
        c1 = -2 * 0.7978845608028654 * 1.4426950408889634
        a("v_mul_f32 v11, v8, v8\nv_mul_f32 v11, 0x%x, v11\nv_add_f32 v11, 0x%x, v11\nv_mul_f32 v11, v11, v8" % (f2u(c1 * 0.044715), f2u(c1)))
        a("v_exp_f32 v11, v11\ns_nop 0\nv_add_f32 v11, 1.0, v11\nv_rcp_f32 v11, v11\ns_nop 0\nv_mul_f32 v8, v8, v11"); rbf(a, 8)
    a("global_store_dword v9, v8, s[6:7]\ns_waitcnt vmcnt(0)")
    a("%s_end:\ns_endpgm" % name)
    return "kernel=%s grid=(%d,1,1) block=(256,1,1) lds=0" % (name, nwg)

def k_softmax(a):
    kernel_begin(a, "sm_kernel")
    a("s_cmp_ge_u32 s2, 32\ns_cbranch_scc1 sm_end")
    a("s_load_dwordx2 s[6:7], s[0:1], 104")
    a("s_lshl_b32 s3, s2, 15\ns_add_u32 s3, s3, 0x%x\nv_lshlrev_b32 v1, 4, v0\nv_add_u32 v1, s3, v1\ns_waitcnt lgkmcnt(0)" % SC)
    a("v_mov_b32 v2, v1")
    for i in range(32):
        a("global_load_dwordx4 v[%d:%d], v2, s[6:7]\nv_add_u32 v2, 1024, v2" % (16 + 4 * i, 19 + 4 * i))
    a("s_waitcnt vmcnt(0)\nv_mov_b32 v4, v16")
    for i in range(1, 128): a("v_max_f32 v4, v4, v%d" % (16 + i))
    for m in ("quad_perm:[1,0,3,2]", "quad_perm:[2,3,0,1]", "row_half_mirror", "row_mirror"):
        a("s_nop 1\nv_max_f32_dpp v4, v4, v4 %s row_mask:0xf bank_mask:0xf" % m)
    a("v_mov_b32 v5, v4\ns_nop 1\nv_permlane16_swap_b32 v5, v4\ns_nop 1\nv_max_f32 v4, v4, v5")
    a("v_mov_b32 v5, v4\ns_nop 1\nv_permlane32_swap_b32 v5, v4\ns_nop 1\nv_max_f32 v4, v4, v5")
    c = 128 ** -0.5 * 1.4426950408889634
    a("v_mov_b32 v6, 0")
    for i in range(128):
        a("v_sub_f32 v%d, v%d, v4\nv_mul_f32 v%d, 0x%x, v%d\nv_exp_f32 v%d, v%d\ns_nop 0\nv_add_f32 v6, v6, v%d" % (16 + i, 16 + i, 16 + i, f2u(c), 16 + i, 16 + i, 16 + i, 16 + i))
    wave_sum(a, 6, 5)
    a("v_rcp_f32 v6, v6\ns_nop 0")
    for i in range(128): a("v_mul_f32 v%d, v%d, v6" % (16 + i, 16 + i))
    for i in range(32):
        a("global_store_dwordx4 v1, v[%d:%d], s[6:7]\nv_add_u32 v1, 1024, v1" % (16 + 4 * i, 19 + 4 * i))
    a("s_waitcnt vmcnt(0)\nsm_end:\ns_endpgm")

def k_final(a):
    kernel_begin(a, "fin_kernel")
    a("s_cmp_ge_u32 s2, 2\ns_cbranch_scc1 fin_end")
    a("s_load_dwordx2 s[4:5], s[0:1], 0\ns_load_dwordx2 s[6:7], s[0:1], 104\ns_load_dwordx4 s[8:11], s[0:1], 80")
    a("s_lshl_b32 s3, s2, 8\nv_add_u32 v1, s3, v0\nv_lshlrev_b32 v2, 1, v1\nv_lshlrev_b32 v3, 2, v1")
    a("v_add_u32 v4, 0x%x, v3\nv_add_u32 v5, 0x%x, v3\ns_waitcnt lgkmcnt(0)" % (S_, T_))
    a("global_load_ushort v6, v2, s[4:5]\nglobal_load_ushort v7, v2, s[8:9]\nglobal_load_dword v8, v4, s[6:7]\nglobal_load_dword v9, v5, s[6:7]\ns_waitcnt vmcnt(0)")
    a("v_lshlrev_b32 v6, 16, v6\nv_lshlrev_b32 v7, 16, v7\nv_add_f32 v9, v9, v7"); rbf(a, 9)
    a("v_mul_f32 v10, 0x%x, v9\nv_exp_f32 v10, v10\ns_nop 0\nv_add_f32 v10, 1.0, v10\nv_rcp_f32 v10, v10\ns_nop 0\nv_mul_f32 v9, v9, v10" % f2u(-1.4426950408889634)); rbf(a, 9)
    a("v_mul_f32 v8, v8, v9"); rbf(a, 8)
    a("v_add_f32 v8, v8, v6\nv_cvt_pk_bf16_f32 v8, v8, v8\nglobal_store_short v2, v8, s[10:11]\ns_waitcnt vmcnt(0)")
    a("fin_end:\ns_endpgm")

def gen(path, probe=None):
    b = Asm(); L = []; D = []
    if probe is not None:
        for (launch, desc) in probe(b):
            L.append(launch); D.append(desc)
    k_ln(b); L.append("kernel=ln_kernel grid=(1,1,1) block=(64,1,1) lds=0"); D.append(("ln_kernel", 32, 32, 32))
    def dot(*k, **kw):
        L.append(k_dot(b, *k, **kw)); D.append((k[0], 64, 32, 64))
    dot("q_kernel", 4096, 12, 512, XN, 0, 0, 4, 16, 0, 2, 8192, Q_, epi="rbf")
    dot("qa_kernel", 16384, 9, 128, Q_, 512, 0, 4, 24, 256, 8192, 2, QA)
    dot("sc_kernel", 262144, 13, 512, QA, 2048, 0, 4, 8, 0, 1024, 2, SC)
    k_softmax(b); L.append("kernel=sm_kernel grid=(32,1,1) block=(64,1,1) lds=0"); D.append(("sm_kernel", 160, 32, 160))
    dot("o_kernel", 16384, 9, 8192, SC, 32768, 0, 4, 8, 0, 2, 1024, O_)
    dot("ctx_kernel", 4096, 7, 512, O_, 2048, 0, 4, 32, 256, 2, 8192, CTX, epi="rbf")
    dot("s_kernel", 512, 12, 4096, CTX, 0, 0, 4, 40, 0, 2, 1024, S_, epi="rbf")
    dot("h_kernel", 1376, 12, 512, Y_, 0, 0, 4, 56, 0, 2, 2752, H1, epi="gelu")
    dot("t_kernel", 512, 12, 1376, H1, 0, 0, 4, 72, 0, 2, 1024, T_, epi="rbf")
    k_final(b); L.append("kernel=fin_kernel grid=(2,1,1) block=(256,1,1) lds=0"); D.append(("fin_kernel", 32, 32, 32))
    a = Asm(); header(a, L); a.lines += b.lines; descriptors(a, D)
    open(path, "w").write(a.text())
if __name__ == "__main__":
    gen("naive.s")
```

```python
from asmlib import *
import naive, math
AMP = 200
def amp(a, s_a, s_b, mode):
    kernel_begin(a, "amp_kernel")
    a("s_cmp_ge_u32 s2, 1\ns_cbranch_scc1 amp_end")
    a("s_load_dwordx2 s[4:5], s[0:1], 104\nv_lshlrev_b32 v1, 9, v0\nv_add_u32 v1, 0x%x, v1\ns_waitcnt lgkmcnt(0)" % STAMP_OFF)
    for i in range(4):
        a("global_load_dword v%d, v1, s[4:5] offset:%d\nglobal_load_dword v%d, v1, s[4:5] offset:%d" % (4 + i, 128 * i + 8 * s_a, 8 + i, 128 * i + 8 * s_b))
    a("s_waitcnt vmcnt(0)\nv_readfirstlane_b32 s8, v4\ns_nop 3")
    for i in range(8): a("v_subrev_u32 v%d, s8, v%d" % (4 + i, 4 + i))
    if mode == "span":
        a("v_min_i32 v4, v4, v5\nv_min_i32 v6, v6, v7\nv_min_i32 v4, v4, v6\nv_max_i32 v8, v8, v9\nv_max_i32 v10, v10, v11\nv_max_i32 v8, v8, v10")
        a("s_mov_b32 s9, 0x7fffffff\ns_mov_b32 s10, 0x80000000\ns_nop 1")
        for l in range(64):
            a("v_readlane_b32 s11, v4, %d\nv_readlane_b32 s12, v8, %d\ns_min_i32 s9, s9, s11\ns_max_i32 s10, s10, s12" % (l, l))
        a("s_sub_i32 s13, s10, s9\ns_mul_i32 s13, s13, %d" % AMP)
    else:
        for i in range(4): a("v_sub_u32 v%d, v%d, v%d" % (8 + i, 8 + i, 4 + i))
        a("v_add_u32 v8, v8, v9\nv_add_u32 v10, v10, v11\nv_add_u32 v8, v8, v10\ns_mov_b32 s9, 0\ns_nop 1")
        for l in range(64): a("v_readlane_b32 s11, v8, %d\ns_add_i32 s9, s9, s11" % l)
        a("s_mul_i32 s13, s9, %d\ns_ashr_i32 s13, s13, 8" % AMP)
    a("s_max_i32 s13, s13, 0\ns_min_i32 s13, s13, 1000000")
    a("s_memrealtime s[14:15]\ns_waitcnt lgkmcnt(0)\ns_add_u32 s13, s13, s14")
    a("amp_w:\ns_memrealtime s[14:15]\ns_waitcnt lgkmcnt(0)\ns_sub_u32 s16, s14, s13\ns_cmp_lt_i32 s16, 0\ns_cbranch_scc1 amp_w")
    a("amp_end:\ns_endpgm")
    return ("kernel=amp_kernel grid=(1,1,1) block=(64,1,1) lds=0", ("amp_kernel", 32, 32, 32))
def stream_probe(nt, segs, s_a, s_b, mode):
    def p(a):
        kernel_begin(a, "probe_kernel")
        stamp(a, 0)
        a("s_cmp_ge_u32 s2, 256\ns_cbranch_scc1 probe_end")
        a("s_load_dwordx2 s[4:5], s[0:1], 104\ns_load_dwordx16 s[16:31], s[0:1], 0\nv_lshlrev_b32 v1, 4, v0\ns_waitcnt lgkmcnt(0)")
        stamp(a, 1)
        vr = 16
        for (inp, kb) in segs:
            a("s_mul_i32 s10, s2, %d" % (kb * 1024))
            if inp >= 0: a("s_add_u32 s12, s%d, s10\ns_addc_u32 s13, s%d, 0" % (16 + 2 * inp, 17 + 2 * inp))
            else: a("s_add_u32 s10, s10, 0x%x\ns_add_u32 s12, s4, s10\ns_addc_u32 s13, s5, 0" % (-inp << 20))
            for i in range(kb // 4):
                a("global_load_dwordx4 v[%d:%d], v1, s[12:13] %s\ns_add_u32 s12, s12, 4096\ns_addc_u32 s13, s13, 0" % (vr, vr + 3, nt)); vr += 4
        a("s_waitcnt vmcnt(0)\ns_barrier")
        stamp(a, 2)
        stamps_out(a, 3, "s[4:5]", "s2", 8)
        a("probe_end:\ns_endpgm")
        return [("kernel=probe_kernel grid=(256,1,1) block=(256,1,1) lds=0", ("probe_kernel", 128, 100, 128)), amp(a, s_a, s_b, mode)]
    return p
def icache_probe(a):
    kernel_begin(a, "probe_kernel")
    stamp(a, 0)
    a("s_cmp_ge_u32 s2, 256\ns_cbranch_scc1 probe_end")
    a("s_load_dwordx2 s[4:5], s[0:1], 104\nv_mov_b32 v1, 0\nv_mov_b32 v2, 0")
    for i in range(2048): a("v_add3_u32 v%d, v1, v2, v1" % (3 + (i & 3)))
    stamp(a, 1)
    stamps_out(a, 2, "s[4:5]", "s2", 8)
    a("probe_end:\ns_endpgm")
    return [("kernel=probe_kernel grid=(256,1,1) block=(256,1,1) lds=0", ("probe_kernel", 128, 100, 128)), amp(a, 0, 1, "mean")]
ALL = [(2, 16), (3, 16), (1, 32), (4, 16), (5, 16)]
naive.gen("cal_def.s", stream_probe("", ALL, 0, 2, "span"))
naive.gen("cal_nt.s", stream_probe("nt", ALL, 0, 2, "span"))
naive.gen("cal_skew.s", stream_probe("nt", ALL, 0, 0, "span"))
naive.gen("cal_zero.s", stream_probe("nt", ALL, 0, 0, "mean"))
naive.gen("cal_icache.s", icache_probe)
naive.gen("cal_karg.s", stream_probe("nt", ALL, 0, 1, "mean"))
naive.gen("cal_def_mean.s", stream_probe("", ALL, 1, 2, "mean"))
naive.gen("cal_nt_mean.s", stream_probe("nt", ALL, 1, 2, "mean"))
naive.gen("cal_wq4_def.s", stream_probe("", [(2, 4)], 1, 2, "mean"))
naive.gen("cal_wq4_nt.s", stream_probe("nt", [(2, 4)], 1, 2, "mean"))
naive.gen("cal_ws0_def.s", stream_probe("", [(-1, 4)], 1, 2, "mean"))
naive.gen("cal_ws250_def.s", stream_probe("", [(-250, 4)], 1, 2, "mean"))
```

```python
import re
TRANS = ("v_exp_f32", "v_log_f32", "v_rcp_f32", "v_rsq_f32", "v_sqrt_f32", "v_sin_f32", "v_cos_f32")
RMW = ("v_fmac_", "v_dot2c_", "v_pk_fmac", "v_writelane")

def regs(op):
    op = op.strip()
    m = re.fullmatch(r"-?(?:abs\()?\|?([vsa])(\d+)\|?\)?", op)
    if m: return {(m.group(1), int(m.group(2)))}
    m = re.fullmatch(r"-?([vsa])\[(\d+):(\d+)\]", op)
    if m: return {(m.group(1), i) for i in range(int(m.group(2)), int(m.group(3)) + 1)}
    if op == "vcc": return {("s", "vcc")}
    if op in ("exec", "exec_lo", "exec_hi"): return {("s", "exec")}
    if op == "m0": return {("s", "m0")}
    return set()

class I:
    def __init__(s, text):
        s.text = text
        t = text.split(";")[0].strip()
        s.label = t[:-1] if t.endswith(":") else None
        s.is_inst = bool(t) and s.label is None and not t.startswith(".")
        s.w = set(); s.r = set(); s.cls = None; s.target = None; s.uncond = False; s.end = False
        s.dpp = False; s.srcc = set(); s.srcab = set(); s.passes = 0; s.stdata = set(); s.lds_dma = False
        s.states = 1 if s.is_inst else 0
        if not s.is_inst: return
        p = t.split(None, 1)
        s.op = op = p[0]
        rest = p[1] if len(p) > 1 else ""
        ops = [o.strip() for o in re.split(r",(?![^\[]*\])", rest)] if rest else []
        mods = ""
        if ops:
            q = ops[-1].split(None, 1)
            ops[-1] = q[0]; mods = q[1] if len(q) > 1 else ""
        R = [regs(o) for o in ops]
        U = lambda l: set().union(*l) if l else set()
        if op == "s_nop": s.cls = "nop"; s.states = int(ops[0], 0) + 1
        elif op.startswith("s_cbranch") or op == "s_branch":
            s.cls = "br"; s.target = ops[0]; s.uncond = op == "s_branch"
        elif op == "s_endpgm": s.cls = "br"; s.end = True
        elif op.startswith("v_mfma"):
            s.cls = "mfma"; s.w = R[0]; s.srcab = R[1] | R[2]; s.srcc = R[3]; s.r = s.srcab | s.srcc
            s.passes = 8 if "32x32" in op else 4
        elif op.startswith("v_"):
            s.cls = "valu"
            s.dpp = "_dpp" in op or "row_" in mods or "quad_perm" in mods
            if op.startswith("v_permlane"): s.w = R[0] | R[1]; s.r = R[0] | R[1]
            elif "_co_" in op: s.w = R[0] | R[1]; s.r = U(R[2:])
            else:
                s.w = R[0]; s.r = U(R[1:])
                if op.startswith(RMW) or s.dpp: s.r |= R[0]
        elif op.startswith(("buffer_", "global_")):
            s.cls = "vmem"
            if "lds" in mods.split() or "_lds_" in op: s.lds_dma = True; s.r = U(R) | {("s", "m0")}
            elif "_load" in op: s.w = R[0]; s.r = U(R[1:])
            else:
                s.r = U(R)
                if "x3" in op or "x4" in op: s.stdata = R[0] if op.startswith("buffer_") else R[1]
        elif op.startswith("ds_"):
            s.cls = "ds"
            if op.startswith(("ds_read", "ds_bpermute", "ds_permute", "ds_swizzle")): s.w = R[0]; s.r = U(R[1:])
            else: s.r = U(R)
        elif op.startswith("s_"):
            s.cls = "salu"
            if op.startswith(("s_cmp", "s_bitcmp", "s_waitcnt", "s_barrier", "s_sleep", "s_setprio")): s.r = U(R)
            else:
                s.w = R[0] if R else set(); s.r = U(R[1:])
                if "saveexec" in op: s.w |= {("s", "exec")}
        else:
            raise ValueError("unknown instruction: " + text)

def need(p, c):
    n = 0
    vw = {x for x in p.w if x[0] in "va"}; sw = {x for x in p.w if x[0] == "s"}
    if p.cls == "valu":
        if vw & c.r:
            if c.cls == "mfma": n = max(n, 2)
            if c.cls == "valu":
                if c.dpp or c.op.startswith("v_permlane"): n = max(n, 2)
                if c.op.startswith(("v_readlane", "v_readfirstlane")): n = max(n, 1)
            if p.op.startswith(TRANS): n = max(n, 1)
        if p.op.startswith("v_dot2") and vw & (c.r | c.w):
            same_acc = c.op == p.op and c.w == p.w
            if not same_acc: n = max(n, 3)
        if sw & c.r:
            if c.cls == "valu": n = max(n, 4 if c.op.startswith(("v_readlane", "v_writelane")) else 2)
            if c.cls == "vmem": n = max(n, 5)
    if p.cls == "mfma":
        big = p.passes == 8
        if c.cls == "mfma":
            if p.w & c.srcab: n = max(n, 12 if big else 8)
            if p.w & c.srcc and not (p.w == c.srcc and p.passes == c.passes): n = max(n, 10 if big else 6)
            if p.w & c.w and not (p.w == c.srcc): n = max(n, 10 if big else 6)
        elif c.cls in ("valu", "vmem", "ds"):
            if p.w & (c.r | c.w): n = max(n, 12 if big else 8)
            if p.srcc & c.w: n = max(n, 7 if big else 3)
    if p.cls == "salu" and ("s", "m0") in p.w and c.lds_dma: n = max(n, 1)
    if p.stdata and p.stdata & c.w: n = max(n, 2)
    return n

def fix(lines):
    ins = [I(l) for l in lines]
    changed = True
    start = 0
    while changed:
        changed = False
        lab = {x.label: i for i, x in enumerate(ins) if x.label}
        jumps = {}
        for i, x in enumerate(ins):
            if x.target in lab: jumps.setdefault(lab[x.target], []).append(i)
        def preds(i):
            out = list(jumps.get(i, []))
            if i > 0 and not (ins[i - 1].uncond or ins[i - 1].end): out.append(i - 1)
            return out
        for i, c in enumerate(ins):
            if i < start or not c.is_inst or c.cls in ("nop", "br"): continue
            short = 0
            stack = [(j, 0) for j in preds(i)]; seen = set()
            while stack:
                j, d = stack.pop()
                if d >= 12 or (j, d) in seen: continue
                seen.add((j, d))
                p = ins[j]
                if p.is_inst: short = max(short, need(p, c) - d)
                for k in preds(j): stack.append((k, d + p.states))
            if short > 0:
                ins.insert(i, I("    s_nop %d" % (short - 1)))
                changed = True
                start = i
                break
    return [x.text for x in ins]
```

```python
import struct, sys
from asmlib import Asm, KN, STAMP_OFF, header, kernel_begin, descriptors
import hz

def f2u(x): return struct.unpack("<I", struct.pack("<f", x))[0]
LOG2E = 1.4426950408889634

RQ, RQA, RH = 0x10000, 0x40000, 0x60000
RP, RO, RS, RT = 0x100000, 0x200000, 0x300000, 0x400000
WS_BYTES = 268435456
ROW, COL, QA, W1, MISC = 0, 65536, 131072, 147456, 155648
WQ, WUK = COL, COL + 16384
WUV, TB, OX = ROW, ROW + 16384, ROW + 32768
FL, XN, YN, BX, ML, CX, ML2 = MISC, MISC + 256, MISC + 1280, MISC + 2304, MISC + 3328, MISC + 3840, MISC + 4352
LDS_BYTES = 163840
F_B, F_COL, F_S, F_HP, F_O, F_OPUB, F_D, F_SPUB, F_G2, F_QPUB = 0, 4, 8, 12, 16, 20, 24, 28, 32, 36
S_B, S_WAVE, S_W, S_X, S_R, S_TO = 2, 3, 4, 5, 6, 7
P_X, P_CKV, P_WQ, P_WUK, P_WUV, P_WO, P_W1, P_B1, P_W2, P_B2, P_OUT, P_WS = 8, 10, 12, 14, 16, 18, 22, 24, 26, 28, 30, 34
SRD_WS, SRD_A, SRD_B, SRD_C, SRD_D = 36, 40, 44, 48, 52
S_TAG, S_MASK = 56, 57
T0, T1, T2, T3 = 58, 59, 60, 61
S_H, S_J, S_PHI, S_MQ, S_PLO, S_PHI2 = 96, 97, 98, 99, 100, 101
DPPM = "row_mask:0xf bank_mask:0xf"

class G:
    def __init__(self, opt):
        self.a = Asm(); self.o = opt; self.nlab = 0; self.nv = 0; self.maxv = 0
    def __call__(self, s): self.a(s)
    def lab(self, n):
        self.nlab += 1; return "L_%s_%d" % (n, self.nlab)
    def v(self, n=1, al=1):
        if n >= 2: al = max(al, 2)
        self.nv = (self.nv + al - 1) // al * al
        r = self.nv; self.nv += n; self.maxv = max(self.maxv, self.nv)
        assert self.nv <= 256
        return r
    def stamp(self, slot):
        if self.o.get("diag"): self("s_memrealtime s[%d:%d]" % (64 + 2 * slot, 65 + 2 * slot))
    def srd(self, s, p, nbytes):
        self("s_mov_b32 s%d, s%d\ns_mov_b32 s%d, s%d\ns_mov_b32 s%d, 0x%x\ns_mov_b32 s%d, 0x20000" % (s, p, s + 1, p + 1, s + 2, nbytes, s + 3))
    def spin(self, loop):
        self("s_sub_u32 s%d, s%d, 1\ns_cbranch_scc1 L_exit\ns_branch %s" % (S_TO, S_TO, loop))

def vr(r, n): return "v[%d:%d]" % (r, r + n - 1)
def sr(r, n): return "s[%d:%d]" % (r, r + n - 1)

def set_flag(g, f, per_wave=True):
    g("ds_write_b32 v%d, v%d offset:%d" % (g.vFLw if per_wave else g.vFL, g.vOne, 4 * f))

def wait_flags(g, f, n=4, sleep=0, extra=None):
    t = g.vT
    loop, done = g.lab("wf"), g.lab("wfd")
    g("%s:" % loop)
    if n == 4: g("ds_read_b128 %s, v%d offset:%d" % (vr(t, 4), g.vFL, 4 * f))
    else: g("ds_read_b32 v%d, v%d offset:%d" % (t, g.vFL, 4 * f))
    if extra: extra()
    g("s_waitcnt lgkmcnt(0)")
    if n == 4: g("v_min3_u32 v%d, v%d, v%d, v%d\nv_min_u32 v%d, v%d, v%d" % (t, t, t + 1, t + 2, t, t, t + 3))
    g("v_cmp_ne_u32 vcc, 0, v%d\ns_cbranch_vccnz %s" % (t, done))
    if sleep: g("s_sleep %d" % sleep)
    g.spin(loop)
    g("%s:" % done)

def check_words(g, acc, words):
    g("v_xor_b32 v%d, s%d, v%d" % (acc, S_TAG, words[0]))
    for x in words[1:]:
        g("v_bitop3_b32 v%d, v%d, s%d, v%d bitop3:0xbe" % (acc, x, S_TAG, acc))

def gather(g, name, issue, words, bytetag, between=None, sleep=1, pre_exec=None):
    loop, chk, done = g.lab(name), g.lab(name + "c"), g.lab(name + "d")
    acc = g.vT
    if pre_exec: g("s_mov_b64 exec, %s" % pre_exec)
    issue()
    if between:
        if pre_exec: g("s_mov_b64 exec, -1")
        between()
        if pre_exec: g("s_mov_b64 exec, %s" % pre_exec)
    g("s_branch %s" % chk)
    g("%s:" % loop)
    if sleep: g("s_sleep %d" % sleep)
    issue()
    g("%s:" % chk)
    g("s_waitcnt vmcnt(0)")
    check_words(g, acc, words)
    if bytetag: g("v_and_b32 v%d, 0xff, v%d" % (acc, acc))
    g("v_cmp_ne_u32 vcc, 0, v%d\ns_cbranch_vccz %s" % (acc, done))
    g("s_mov_b64 exec, vcc")
    g.spin(loop)
    g("%s:" % done)
    g("s_mov_b64 exec, -1")

def wave_red(g, v, t, op):
    for k in (8, 4, 2, 1):
        g("%s_dpp v%d, v%d, v%d row_ror:%d %s" % (op, v, v, v, k, DPPM))
    rows_red(g, v, t, op)

def rows_red(g, v, t, op):
    g("v_mov_b32 v%d, v%d\nv_permlane16_swap_b32 v%d, v%d\n%s v%d, v%d, v%d" % (t, v, t, v, op, v, v, t))
    g("v_mov_b32 v%d, v%d\nv_permlane32_swap_b32 v%d, v%d\n%s v%d, v%d, v%d" % (t, v, t, v, op, v, v, t))

def rbf(g, v):
    g("v_cvt_pk_bf16_f32 v%d, v%d, v%d\nv_lshlrev_b32 v%d, 16, v%d" % (v, v, v, v, v))

def unpack(g, dst, src, n):
    for i in range(n):
        g("v_lshlrev_b32 v%d, 16, v%d\nv_and_b32 v%d, 0xffff0000, v%d" % (dst + 2 * i, src + i, dst + 2 * i + 1, src + i))

def layernorm(g, pk, f, t):
    unpack(g, f, pk, 4)
    g("v_add_f32 v%d, v%d, v%d\nv_add_f32 v%d, v%d, v%d" % (t, f, f + 1, t + 1, f + 2, f + 3))
    g("v_add_f32 v%d, v%d, v%d\nv_add_f32 v%d, v%d, v%d" % (t, t, f + 4, t + 1, t + 1, f + 5))
    g("v_add_f32 v%d, v%d, v%d\nv_add_f32 v%d, v%d, v%d" % (t, t, f + 6, t + 1, t + 1, f + 7))
    g("v_add_f32 v%d, v%d, v%d" % (t, t, t + 1))
    wave_red(g, t, t + 1, "v_add_f32")
    g("v_mul_f32 v%d, 0x%x, v%d" % (t, f2u(1 / 512), t))
    for i in range(8):
        g("v_sub_f32 v%d, v%d, v%d" % (t + 1, f + i, t))
        g(("v_mul_f32 v%d, v%d, v%d" if i == 0 else "v_fmac_f32 v%d, v%d, v%d") % (t + 2, t + 1, t + 1))
    wave_red(g, t + 2, t + 1, "v_add_f32")
    g("v_mul_f32 v%d, 0x%x, v%d" % (t + 2, f2u(1 / 512), t + 2))
    rbf(g, t); rbf(g, t + 2)
    g("v_add_f32 v%d, 0x%x, v%d" % (t + 2, f2u(1e-5), t + 2)); rbf(g, t + 2)
    g("v_sqrt_f32 v%d, v%d" % (t + 2, t + 2))
    for i in range(8): g("v_sub_f32 v%d, v%d, v%d" % (f + i, f + i, t))
    rbf(g, t + 2)
    g("v_rcp_f32 v%d, v%d" % (t + 2, t + 2))
    for i in range(4): g("v_cvt_pk_bf16_f32 v%d, v%d, v%d" % (pk + i, f + 2 * i, f + 2 * i + 1))
    unpack(g, f, pk, 4)
    for i in range(8): g("v_mul_f32 v%d, v%d, v%d" % (f + i, f + i, t + 2))
    for i in range(4): g("v_cvt_pk_bf16_f32 v%d, v%d, v%d" % (pk + i, f + 2 * i, f + 2 * i + 1))

def dma(g, voff, srd, soff, sm0, n, sstep, mod=""):
    for i in range(n):
        g("s_mov_b32 m0, s%d" % sm0)
        if i < n - 1: g("s_add_u32 s%d, s%d, 1024" % (sm0, sm0))
        g("buffer_load_dwordx4 v%d, %s, s%d offen %s lds" % (voff, sr(srd, 4), soff, mod))
        if i < n - 1: g("s_add_u32 s%d, s%d, %d" % (soff, soff, sstep))

def mfma(g, d, a, b, c=None):
    g("v_mfma_f32_16x16x32_bf16 %s, %s, %s, %s" % (vr(d, 4), vr(a, 4), vr(b, 4), "0" if c is None else vr(c, 4)))

def transpose8(g, src, dst):
    for c in range(4):
        for p in range(4):
            g("v_perm_b32 v%d, v%d, v%d, s%d" % (dst + 8 * c + p, src + 8 * p + 4 + c, src + 8 * p + c, S_PLO))
            g("v_perm_b32 v%d, v%d, v%d, s%d" % (dst + 8 * c + 4 + p, src + 8 * p + 4 + c, src + 8 * p + c, S_PHI2))

def tagbytes(g, dst, srcs):
    for i, s in enumerate(srcs):
        g("v_and_or_b32 v%d, v%d, s%d, v%d" % (dst + i, s, S_MASK, g.vTagB))

def epoch_load(g):
    g.srd(SRD_WS, P_WS, WS_BYTES)
    g("buffer_load_dword v%d, v%d, %s, 0 offen sc1" % (g.vTagB, g.vZero, sr(SRD_WS, 4)))

def epoch_ready(g):
    g("v_add_u32 v%d, 0x9e3779b1, v%d\nv_readfirstlane_b32 s%d, v%d\nv_and_b32 v%d, 0xff, v%d" % (g.vTagB, g.vTagB, S_TAG, g.vTagB, g.vTagB, g.vTagB))

def mlp_ids(g):
    g("s_mul_i32 s%d, s%d, 5\ns_min_u32 s%d, s%d, 3\ns_add_u32 s%d, s%d, s%d" % (S_PHI, S_X, T0, S_X, S_PHI, S_PHI, T0))
    g("s_lshr_b32 s%d, s%d, 2\ns_add_u32 s%d, s%d, s%d\ns_and_b32 s%d, s%d, 3" % (T1, S_R, S_PHI, S_PHI, T1, S_MQ, S_R))
    g("s_cmp_lt_u32 s%d, 3\ns_cselect_b32 s%d, 6, 5\ns_cmp_lt_u32 s%d, s%d" % (S_X, T0, T1, T0))

def slab_gemv(g, base_v, nks, opB, acc, opA):
    for ks in range(nks):
        for t in range(2):
            r = opA + 8 * ks + 4 * t
            g("ds_read_b64_tr_b16 %s, v%d offset:%d" % (vr(r, 2), base_v, ks * 2048 + 8 * t))
            g("ds_read_b64_tr_b16 %s, v%d offset:%d" % (vr(r + 2, 2), base_v, ks * 2048 + 256 + 8 * t))
    for ks in range(nks):
        g("s_waitcnt lgkmcnt(%d)" % min(15, 4 * (nks - 1 - ks)))
        for t in range(2):
            mfma(g, acc + 4 * t, opA + 8 * ks + 4 * t, opB + 4 * ks, None if ks == 0 else acc + 4 * t)

def publish_slab(g, acc, gr, voff, soff):
    g("v_and_b32 v%d, 1, v%d\nv_cmp_eq_u32 vcc, 1, v%d" % (g.vT, g.vN, g.vT))
    for i in range(4): g("v_cndmask_b32 v%d, v%d, v%d, vcc" % (gr + i, acc + i, acc + 4 + i))
    tagbytes(g, gr, [gr + i for i in range(4)])
    g("s_mov_b32 exec_lo, 0x00030003\ns_mov_b32 exec_hi, 0x00030003")
    g("buffer_store_dwordx4 %s, v%d, %s, s%d offen sc1" % (vr(gr, 4), voff, sr(SRD_WS, 4), soff))
    g("s_mov_b64 exec, -1")

def diag_out(g, nslots, rowoff):
    if not g.o.get("diag"): return
    skip = g.lab("dg")
    g("s_cmp_lg_u32 s%d, 0\ns_cbranch_scc1 %s" % (S_W, skip))
    g("s_waitcnt lgkmcnt(0)\ns_mov_b64 exec, 1")
    g("s_add_u32 s%d, s%d, %d\ns_lshl_b32 s%d, s%d, 7\ns_add_u32 s%d, s%d, 0x%x" % (T0, S_B, rowoff, T0, T0, T0, T0, STAMP_OFF))
    t = g.vT
    g("v_mov_b32 v%d, 0" % (t + 2))
    for s in range(nslots):
        g("v_mov_b32 v%d, s%d\nv_mov_b32 v%d, s%d" % (t, 64 + 2 * s, t + 1, 65 + 2 * s))
        g("buffer_store_dwordx2 %s, v%d, %s, s%d offen offset:%d\ns_nop 1" % (vr(t, 2), t + 2, sr(SRD_WS, 4), T0, 8 * s))
    g("s_mov_b64 exec, -1")
    g("%s:" % skip)

def head(g):
    o = g.o
    vQ, vL16, vTr = g.v(), g.v(), g.v()
    L, N, Gq = g.vL, g.vN, g.vG
    g("s_lshr_b32 s%d, s%d, 3\ns_lshl_b32 s%d, s%d, 2\ns_add_u32 s%d, s%d, s%d\ns_and_b32 s%d, s%d, 7" % (T0, S_R, S_H, S_X, S_H, S_H, T0, S_J, S_R))
    g("v_lshrrev_b32 v%d, 2, v%d\nv_lshlrev_b32 v%d, 13, v%d\nv_and_b32 v%d, 3, v%d\nv_lshl_add_u32 v%d, v%d, 4, v%d" % (vQ, L, vQ, vQ, vTr, L, vQ, vTr, vQ))
    g("v_lshlrev_b32 v%d, 4, v%d" % (vL16, L))
    g("s_lshl_b32 s%d, s%d, 19\ns_lshl_b32 s%d, s%d, 8\ns_add_u32 s%d, s%d, s%d\ns_lshl_b32 s%d, s%d, 6\ns_add_u32 s%d, s%d, s%d" % (T0, S_J, T1, S_H, T0, T0, T1, T1, S_W, T0, T0, T1))
    g("s_mov_b32 s%d, s%d" % (T2, T0))
    g("s_lshl_b32 s%d, s%d, 12\ns_add_u32 s%d, s%d, %d" % (T1, S_W, T1, T1, WQ))
    vX = g.v(4, 4)
    g("s_waitcnt lgkmcnt(0)")
    g.stamp(1)
    g.srd(SRD_A, P_X, 1024)
    g("buffer_load_dwordx4 %s, v%d, %s, 0 offen" % (vr(vX, 4), vL16, sr(SRD_A, 4)))
    g.srd(SRD_B, P_WQ, 4194304)
    dma(g, vQ, SRD_B, T0, T1, 4, 16 * 8192)
    epoch_load(g)
    g.srd(SRD_C, P_WUK, 4194304)
    vK = g.v()
    g("v_lshrrev_b32 v%d, 2, v%d\nv_lshlrev_b32 v%d, 15, v%d\nv_lshl_add_u32 v%d, v%d, 4, v%d" % (vK, L, vK, vK, vK, vTr, vK))
    g("s_lshl_b32 s%d, s%d, 12\ns_add_u32 s%d, s%d, %d" % (T1, S_W, T1, T1, WUK))
    def wuk(): dma(g, vK, SRD_C, T2, T1, 4, 8192)
    if o["wuk"] == "early": wuk()
    g("s_barrier")
    g("v_lshlrev_b32 v%d, 4, v%d\nv_lshl_add_u32 v%d, v%d, 9, v%d" % (vTr, N, vTr, Gq, vTr))
    g("s_waitcnt vmcnt(%d)" % (9 if o["wuk"] == "early" else 5))
    g.stamp(2)
    if o["wuk"] == "x": wuk()
    f, t = g.v(8), g.v(3)
    layernorm(g, vX, f, t)
    vA = g.v()
    g("v_add_u32 v%d, %d, v%d\nds_write_b128 v%d, %s" % (vA, XN, vL16, vA, vr(vX, 4)))
    opB = g.v(16, 4); opA = g.v(32, 4); acc = g.v(16, 4); gr = g.v(4, 4)
    g("s_lshl_b32 s%d, s%d, 7\ns_add_u32 s%d, s%d, %d\nv_lshlrev_b32 v%d, 4, v%d\nv_add_u32 v%d, s%d, v%d" % (T0, S_J, T0, T0, XN, vA, Gq, vA, T0, vA))
    g("ds_read_b128 %s, v%d\nds_read_b128 %s, v%d offset:64" % (vr(opB, 4), vA, vr(opB + 4, 4), vA))
    if o["wuk"] == "ln": wuk()
    vB = g.v()
    g("s_lshl_b32 s%d, s%d, 12\ns_add_u32 s%d, s%d, %d\nv_add_u32 v%d, s%d, v%d" % (T0, S_W, T0, T0, WQ, vB, T0, vTr))
    vP = g.v()
    g("v_lshlrev_b32 v%d, 4, v%d\nv_lshl_add_u32 v%d, v%d, 5, v%d" % (vP, N, vP, Gq, vP))
    g("s_lshl_b32 s%d, s%d, 12\ns_lshl_b32 s%d, s%d, 7\ns_add_u32 s%d, s%d, s%d\ns_add_u32 s%d, s%d, 0x%x" % (T2, S_H, T0, S_W, T2, T2, T0, T2, T2, RQ))
    g("s_lshl_b32 s%d, s%d, 9\ns_add_u32 s%d, s%d, s%d" % (T3, S_J, T3, T3, T2))
    g("s_waitcnt vmcnt(4) lgkmcnt(0)")
    g.stamp(3)
    slab_gemv(g, vB, 2, opB, acc, opA)
    epoch_ready(g)
    publish_slab(g, acc, gr, vP, T3)
    g.stamp(4)
    vG1 = g.v()
    g("v_lshrrev_b32 v%d, 1, v%d\nv_lshlrev_b32 v%d, 9, v%d\nv_lshl_add_u32 v%d, v%d, 5, v%d" % (vG1, N, vG1, vG1, vG1, Gq, vG1))
    g("v_and_b32 v%d, 1, v%d\nv_lshl_add_u32 v%d, v%d, 4, v%d" % (vA, N, vG1, vA, vG1))
    g("s_lshl_b32 s%d, s%d, 12\ns_add_u32 s%d, s%d, %d" % (T0, S_W, T0, T0, WUK))
    g("v_lshlrev_b32 v%d, 6, v%d\nv_lshl_add_u32 v%d, v%d, 4, v%d\nv_add_u32 v%d, s%d, v%d" % (vA, N, vA, Gq, vA, vA, T0, vA))
    g("s_waitcnt vmcnt(0)")
    g.stamp(5)
    q = g.v(4, 4)
    def i1(): g("buffer_load_dwordx4 %s, v%d, %s, s%d offen sc1" % (vr(q, 4), vG1, sr(SRD_WS, 4), T2))
    def b1():
        for tt in range(4): g("ds_read_b128 %s, v%d offset:%d" % (vr(opA + 4 * tt, 4), vA, 1024 * tt))
        g("s_lshl_b32 s%d, s%d, 8\ns_add_u32 s%d, s%d, %d\nv_lshlrev_b32 v%d, 4, v%d\nv_add_u32 v%d, s%d, v%d" % (T0, S_W, T0, T0, BX, vB, N, vP, T0, vB))
    gather(g, "h1", i1, [q + i for i in range(4)], True, between=b1)
    g.stamp(6)
    for i in range(4): g("v_and_b32 v%d, s%d, v%d" % (q + i, S_MASK, q + i))
    for k in (2, 4, 8):
        for i in range(4): g("v_add_f32_dpp v%d, v%d, v%d row_ror:%d %s" % (q + i, q + i, q + i, k, DPPM))
    g("v_cvt_pk_bf16_f32 v%d, v%d, v%d\nv_cvt_pk_bf16_f32 v%d, v%d, v%d" % (opB, q, q + 1, opB + 1, q + 2, q + 3))
    g("v_mov_b32_dpp v%d, v%d quad_perm:[1,0,3,2] %s\nv_mov_b32_dpp v%d, v%d quad_perm:[1,0,3,2] %s" % (opB + 2, opB, DPPM, opB + 3, opB + 1, DPPM))
    g("s_waitcnt lgkmcnt(0)")
    for tt in range(4): mfma(g, acc + 4 * tt, opB, opA + 4 * tt)
    g("ds_write2_b32 v%d, v%d, v%d offset0:0 offset1:1" % (vP, acc, acc + 4))
    g("ds_write2_b32 v%d, v%d, v%d offset0:2 offset1:3" % (vP, acc + 8, acc + 12))
    set_flag(g, F_B)
    skipq = g.lab("nq")
    g("s_cmp_lg_u32 s%d, 0\ns_cbranch_scc1 %s" % (S_W, skipq))
    def rb():
        for k in range(4): g("ds_read_b128 %s, v%d offset:%d" % (vr(opA + 4 * k, 4), vP, 256 * k))
    g("s_lshl_b32 s%d, s%d, 11\ns_lshl_b32 s%d, s%d, 8\ns_add_u32 s%d, s%d, s%d\ns_add_u32 s%d, s%d, 0x%x" % (T0, S_H, T1, S_J, T0, T0, T1, T0, T0, RQA))
    g("v_mov_b32 v%d, 0\nv_mov_b32 v%d, s%d" % (gr + 2, gr + 3, S_TAG))
    wait_flags(g, F_B, extra=rb)
    for i in range(4):
        g("v_add_f32 v%d, v%d, v%d\nv_add_f32 v%d, v%d, v%d" % (opA + i, opA + i, opA + 4 + i, opA + 8 + i, opA + 8 + i, opA + 12 + i))
    for i in range(4):
        g("v_add_f32 v%d, v%d, v%d" % (opA + i, opA + i, opA + 8 + i))
    for i in range(4):
        g("v_mul_f32 v%d, 0x%x, v%d" % (opA + i, f2u(128 ** -0.5 * LOG2E), opA + i))
    g("v_cvt_pk_bf16_f32 v%d, v%d, v%d\nv_cvt_pk_bf16_f32 v%d, v%d, v%d" % (gr, opA, opA + 1, gr + 1, opA + 2, opA + 3))
    g("s_mov_b64 exec, 0xffff")
    g("buffer_store_dwordx4 %s, v%d, %s, s%d offen sc1" % (vr(gr, 4), vB, sr(SRD_WS, 4), T0))
    g("s_mov_b64 exec, -1")
    g.stamp(7)
    g("s_waitcnt vmcnt(0)")
    set_flag(g, F_QPUB, per_wave=False)
    g("%s:" % skipq)
    g.srd(SRD_A, P_CKV, 8388608)
    g("v_lshrrev_b32 v%d, 3, v%d\nv_and_b32 v%d, 6, v%d\nv_and_b32 v%d, 7, v%d\nv_xor_b32 v%d, v%d, v%d" % (vA, L, vB, vA, vK, L, vB, vB, vK))
    g("v_lshlrev_b32 v%d, 10, v%d\nv_lshl_add_u32 v%d, v%d, 4, v%d" % (vA, vA, vA, vB, vA))
    g("s_lshl_b32 s%d, s%d, 20\ns_lshr_b32 s%d, s%d, 4\ns_lshl_b32 s%d, s%d, 19\ns_add_u32 s%d, s%d, s%d" % (T0, S_X, T1, S_R, T1, T1, T0, T0, T1))
    g("s_lshl_b32 s%d, s%d, 17\ns_add_u32 s%d, s%d, s%d\ns_lshl_b32 s%d, s%d, 7\ns_add_u32 s%d, s%d, s%d" % (T1, S_W, T0, T0, T1, T1, S_J, T2, T0, T1))
    g("s_lshl_b32 s%d, s%d, 14\ns_add_u32 s%d, s%d, %d" % (T3, S_W, T3, T3, COL))
    wait_flags(g, F_G2, sleep=1)
    g.stamp(8)
    dma(g, vA, SRD_A, T2, T3, 16, 8192)
    nomlp, colw = g.lab("nm"), g.lab("cw")
    g("s_cmp_lg_u32 s%d, 3\ns_cbranch_scc1 %s" % (S_W, nomlp))
    mlp_ids(g)
    g("s_cbranch_scc0 %s" % nomlp)
    g.srd(SRD_B, P_W1, 512 * 2752)
    g("v_lshrrev_b32 v%d, 2, v%d\nv_mul_u32_u24 v%d, 2752, v%d\nv_and_b32 v%d, 3, v%d\nv_lshl_add_u32 v%d, v%d, 4, v%d" % (vA, L, vA, vA, vB, L, vA, vB, vA))
    g("s_mul_i32 s%d, s%d, %d\ns_lshl_b32 s%d, s%d, 6\ns_add_u32 s%d, s%d, s%d\ns_mov_b32 s%d, %d" % (T2, S_MQ, 128 * 2752, T0, S_PHI, T2, T2, T0, T3, W1))
    dma(g, vA, SRD_B, T2, T3, 8, 16 * 2752)
    layernorm(g, vX, f, t)
    g("v_add_u32 v%d, %d, v%d\nds_write_b128 v%d, %s" % (vA, YN, vL16, vA, vr(vX, 4)))
    g("s_lshl_b32 s%d, s%d, 8\ns_add_u32 s%d, s%d, %d\nv_lshlrev_b32 v%d, 4, v%d\nv_add_u32 v%d, s%d, v%d" % (T0, S_MQ, T0, T0, YN, vA, Gq, vA, T0, vA))
    for ks in range(4): g("ds_read_b128 %s, v%d offset:%d" % (vr(opB + 4 * ks, 4), vA, 64 * ks))
    g("s_waitcnt vmcnt(8)")
    set_flag(g, F_COL)
    g("v_add_u32 v%d, %d, v%d" % (vB, W1, vTr))
    g("v_lshlrev_b32 v%d, 4, v%d\nv_lshl_add_u32 v%d, v%d, 5, v%d" % (vP, N, vP, Gq, vP))
    g("s_lshl_b32 s%d, s%d, 9\ns_lshl_b32 s%d, s%d, 7\ns_add_u32 s%d, s%d, s%d\ns_add_u32 s%d, s%d, 0x%x" % (T2, S_PHI, T0, S_MQ, T2, T2, T0, T2, T2, RH))
    g("s_waitcnt vmcnt(0) lgkmcnt(0)")
    slab_gemv(g, vB, 4, opB, acc, opA)
    publish_slab(g, acc, gr, vP, T2)
    g("s_branch %s" % colw)
    g("%s:" % nomlp)
    g("s_waitcnt vmcnt(0)")
    set_flag(g, F_COL)
    g("%s:" % colw)
    g.stamp(9)
    g.srd(SRD_B, P_WUV, 4194304)
    g.srd(SRD_C, P_WO, 4194304)
    g("s_mov_b32 s%d, 0x05040100\ns_mov_b32 s%d, 0x07060302" % (S_PLO, S_PHI2))
    g("s_and_b32 s%d, s%d, 1\ns_lshl_b32 s%d, s%d, 2\ns_add_u32 s%d, s%d, s%d" % (S_J, S_R, S_J, S_J, S_J, S_J, S_W))
    g("s_lshr_b32 s%d, s%d, 1\ns_and_b32 s%d, s%d, 3" % (S_MQ, S_R, S_MQ, S_MQ))
    g("s_lshl_b32 s%d, s%d, 19\ns_lshl_b32 s%d, s%d, 8\ns_add_u32 s%d, s%d, s%d\ns_lshl_b32 s%d, s%d, 6\ns_add_u32 s%d, s%d, s%d" % (T0, S_J, T1, S_H, T0, T0, T1, T1, S_MQ, T0, T0, T1))
    g("s_lshl_b32 s%d, s%d, 12\ns_add_u32 s%d, s%d, %d" % (T1, S_W, T1, T1, WUV))
    g("s_lshl_b32 s%d, s%d, 17\ns_lshl_b32 s%d, s%d, 15\ns_add_u32 s%d, s%d, s%d\ns_lshl_b32 s%d, s%d, 8\ns_add_u32 s%d, s%d, s%d" % (T2, S_H, T3, S_MQ, T2, T2, T3, T3, S_W, T2, T2, T3))
    g("s_add_u32 s%d, s%d, 4096" % (T3, T2))
    g("v_lshlrev_b32 v%d, 4, v%d\nv_lshl_add_u32 v%d, v%d, 13, v%d" % (vA, N, vA, Gq, vA))
    wo = g.v(32, 4); wot = g.v(32, 4)
    wait_flags(g, F_HP, sleep=1)
    g.stamp(10)
    dma(g, vQ, SRD_B, T0, T1, 4, 16 * 8192)
    for jj in range(8):
        g("buffer_load_dwordx4 %s, v%d, %s, s%d offen offset:%d" % (vr(wo + 4 * jj, 4), vA, sr(SRD_C, 4), T2 if jj < 4 else T3, 1024 * (jj & 3)))
    og = g.v(16, 4); vW, vM, vR, vMr, vC = g.v(2), g.v(), g.v(2), g.v(), g.v(2)
    g("s_lshl_b32 s%d, s%d, 3\ns_add_u32 s%d, s%d, s%d\ns_lshl_b32 s%d, s%d, 12\ns_add_u32 s%d, s%d, 0x%x" % (T2, S_H, T2, T2, S_J, T2, T2, T2, T2, RO))
    g("s_lshl_b32 s%d, s%d, 11\ns_add_u32 s%d, s%d, %d" % (T0, S_W, T0, T0, TB))
    g("v_lshrrev_b32 v%d, 1, v%d\nv_lshrrev_b32 v%d, 1, v%d\nv_xor_b32 v%d, v%d, v%d\nv_lshlrev_b32 v%d, 4, v%d" % (vA, N, vB, Gq, vA, vA, vB, vA, vA))
    g("v_and_b32 v%d, 1, v%d\nv_lshl_add_u32 v%d, v%d, 3, v%d\nv_lshl_add_u32 v%d, v%d, 7, v%d\nv_add_u32 v%d, s%d, v%d" % (vB, N, vA, vB, vA, vA, Gq, vA, vA, T0, vA))
    wad = g.v(4)
    for k in range(4): g("v_xor_b32 v%d, %d, v%d" % (wad + k, 32 * k, vA))
    g("v_lshrrev_b32 v%d, 1, v%d\nv_xor_b32 v%d, v%d, v%d\nv_lshlrev_b32 v%d, 4, v%d\nv_lshl_add_u32 v%d, v%d, 7, v%d\nv_add_u32 v%d, s%d, v%d" % (vA, N, vA, vA, Gq, vA, vA, vA, N, vA, vR, T0, vA))
    g("v_xor_b32 v%d, 64, v%d" % (vR + 1, vR))
    g("s_lshl_b32 s%d, s%d, 7\ns_add_u32 s%d, s%d, %d" % (T0, S_W, T1, T0, ML2))
    g("v_lshlrev_b32 v%d, 2, v%d\nv_lshl_add_u32 v%d, v%d, 3, v%d\nv_add_u32 v%d, s%d, v%d" % (vB, vB, vB, Gq, vB, vM, T1, vB))
    g("v_lshlrev_b32 v%d, 5, v%d\nv_add_u32 v%d, s%d, v%d" % (vB, Gq, vMr, T1, vB))
    g("s_add_u32 s%d, s%d, %d\nv_lshrrev_b32 v%d, 5, v%d\nv_lshlrev_b32 v%d, 6, v%d\nv_lshl_add_u32 v%d, v%d, 2, v%d\nv_add_u32 v%d, s%d, v%d" % (T1, T0, CX, vA, L, vA, vA, vA, N, vA, vC, T1, vA))
    g("v_and_b32 v%d, 3, v%d\nv_lshlrev_b32 v%d, 7, v%d\nv_add3_u32 v%d, v%d, v%d, v%d\nv_add_u32 v%d, %d, v%d" % (vA, N, vA, vA, vA, vA, vB, g.vZero, vC + 1, CX, vA))
    g("v_lshrrev_b32 v%d, 2, v%d\nv_lshlrev_b32 v%d, 6, v%d\nv_and_b32 v%d, 3, v%d\nv_lshl_add_u32 v%d, v%d, 3, v%d\nv_lshl_add_u32 v%d, v%d, 9, v%d" % (vA, N, vA, vA, vB, N, vA, vB, vA, vA, Gq, vA))
    g("s_lshl_b32 s%d, s%d, 12\ns_add_u32 s%d, s%d, %d\nv_add_u32 v%d, s%d, v%d" % (T0, S_W, T0, T0, WUV, vTr, T0, vA))
    g("s_lshl_b32 s%d, s%d, 11\ns_lshl_b32 s%d, s%d, 9\ns_add_u32 s%d, s%d, s%d\ns_add_u32 s%d, s%d, 0x%x" % (T3, S_B, T0, S_W, T3, T3, T0, T3, T3, RS))
    wait_flags(g, F_OPUB, sleep=1)
    g.stamp(11)
    def i3():
        for k in range(4): g("buffer_load_dwordx4 %s, v%d, %s, s%d offen offset:%d sc1" % (vr(og + 4 * k, 4), vL16, sr(SRD_WS, 4), T2, 1024 * k))
    def b3():
        g("s_waitcnt vmcnt(12)")
        for ks in range(2):
            for tt in range(2):
                r = opA + 8 * ks + 4 * tt
                g("ds_read_b64_tr_b16 %s, v%d offset:%d" % (vr(r, 2), vTr, ks * 2048 + 32 * tt))
                g("ds_read_b64_tr_b16 %s, v%d offset:%d" % (vr(r + 2, 2), vTr, ks * 2048 + 256 + 32 * tt))
        g("s_waitcnt vmcnt(4)")
        transpose8(g, wo, wot)
    gather(g, "h3", i3, [og + 4 * k + 3 for k in range(4)], False, between=b3)
    g.stamp(12)
    for k in range(4):
        g("ds_write_b64 v%d, %s offset:%d" % (wad + k, vr(og + 4 * k, 2), 512 * k))
        g("ds_write_b32 v%d, v%d offset:%d" % (vM, og + 4 * k + 2, 32 * k))
    ml = g.v(8, 4)
    g("ds_read_b128 %s, v%d\nds_read_b128 %s, v%d offset:16" % (vr(ml, 4), vMr, vr(ml + 4, 4), vMr))
    g("ds_read_b128 %s, v%d\nds_read_b128 %s, v%d" % (vr(opB, 4), vR, vr(opB + 4, 4), vR + 1))
    g("s_waitcnt lgkmcnt(0)")
    for ks in range(2):
        for tt in range(2):
            mfma(g, acc + 4 * tt, opB + 4 * ks, opA + 8 * ks + 4 * tt, None if ks == 0 else acc + 4 * tt)
    g("v_max3_f32 v%d, v%d, v%d, v%d\nv_max_f32 v%d, v%d, v%d" % (t, ml, ml + 2, ml + 4, t, t, ml + 6))
    rows_red(g, t, t + 1, "v_max_f32")
    for i in range(4): g("v_sub_f32 v%d, v%d, v%d" % (ml + 2 * i, ml + 2 * i, t))
    for i in range(4): g("v_exp_f32 v%d, v%d" % (ml + 2 * i, ml + 2 * i))
    g("v_mul_f32 v%d, v%d, v%d" % (t, ml, ml + 1))
    for i in range(1, 4): g("v_fmac_f32 v%d, v%d, v%d" % (t, ml + 2 * i, ml + 2 * i + 1))
    for tt in range(2):
        g("v_mul_f32 v%d, v%d, v%d" % (f + tt, ml, acc + 4 * tt))
        for i in range(1, 4): g("v_fmac_f32 v%d, v%d, v%d" % (f + tt, ml + 2 * i, acc + 4 * tt + i))
    rows_red(g, t, t + 1, "v_add_f32")
    g("v_permlane32_swap_b32 v%d, v%d\nv_rcp_f32 v%d, v%d\nv_add_f32 v%d, v%d, v%d" % (f, f + 1, t, t, f, f, f + 1))
    g("v_mov_b32 v%d, v%d\nv_permlane16_swap_b32 v%d, v%d\nv_add_f32 v%d, v%d, v%d\nv_mul_f32 v%d, v%d, v%d" % (f + 1, f, f + 1, f, f, f, f + 1, f, f, t))
    g("ds_write_b32 v%d, v%d" % (vC, f))
    set_flag(g, F_D)
    def rc(): g("ds_read_b128 %s, v%d\nds_read_b128 %s, v%d offset:16" % (vr(ml, 4), vC + 1, vr(ml + 4, 4), vC + 1))
    wait_flags(g, F_D, extra=rc)
    for m in ("quad_perm:[1,0,3,2]", "quad_perm:[2,3,0,1]"):
        for i in range(8): g("v_add_f32_dpp v%d, v%d, v%d %s %s" % (ml + i, ml + i, ml + i, m, DPPM))
    for i in range(4): g("v_cvt_pk_bf16_f32 v%d, v%d, v%d" % (opB + i, ml + 2 * i, ml + 2 * i + 1))
    for u in range(8): mfma(g, wo + 4 * u, opB, wot + 4 * u)
    tagbytes(g, ml, [wo + 4 * u for u in range(8)])
    g("s_mov_b64 exec, 0xffff")
    g("buffer_store_dwordx4 %s, v%d, %s, s%d offen sc1" % (vr(ml, 4), vL16, sr(SRD_WS, 4), T3))
    g("buffer_store_dwordx4 %s, v%d, %s, s%d offen offset:256 sc1" % (vr(ml + 4, 4), vL16, sr(SRD_WS, 4), T3))
    g("s_mov_b64 exec, -1")
    g.stamp(13)
    g("s_waitcnt vmcnt(0)")
    set_flag(g, F_SPUB)
    g.stamp(14)
    diag_out(g, 15, 0)
    g("s_endpgm")

def reduce4(g, v, t):
    g("v_permlane32_swap_b32 v%d, v%d\nv_permlane32_swap_b32 v%d, v%d" % (v, v + 1, v + 2, v + 3))
    g("v_add_f32 v%d, v%d, v%d\nv_add_f32 v%d, v%d, v%d" % (v, v, v + 1, v + 2, v + 2, v + 3))
    g("v_permlane16_swap_b32 v%d, v%d\nv_add_f32 v%d, v%d, v%d" % (v, v + 2, v, v, v + 2))
    for k in (8, 4, 2, 1): g("v_add_f32_dpp v%d, v%d, v%d row_ror:%d %s" % (v, v, v, k, DPPM))

def att(g):
    o = g.o
    L, N, Gq = g.vL, g.vN, g.vG
    S_S, S_E, S_GRP = S_H, S_J, S_PLO
    vA, vB = g.v(), g.v()
    g("s_getpc_b64 s[62:63]\nL_pc:\ns_sub_u32 s62, s62, L_pc-%s\ns_subb_u32 s63, s63, 0" % KN)
    g("v_lshlrev_b32 v%d, 6, v%d\ns_lshl_b32 s%d, s%d, 12\nv_add_u32 v%d, s%d, v%d\nv_min_u32 v%d, L_codeend-%s-4, v%d" % (vA, L, T0, S_W, vA, T0, vA, vA, KN, vA))
    g("global_load_dword v%d, v%d, s[62:63]" % (g.v(), vA))
    g("v_lshlrev_b32 v%d, 2, v%d\nv_add_u32 v%d, %d, v%d\nds_write_b32 v%d, v%d" % (vA, L, vA, FL, vA, vA, g.vZero))
    g("s_lshr_b32 s%d, s%d, 4\ns_lshl_b32 s%d, s%d, 1\ns_add_u32 s%d, s%d, s%d" % (T0, S_R, S_S, S_X, S_S, S_S, T0))
    g("s_and_b32 s%d, s%d, 7\ns_lshr_b32 s%d, s%d, 3\ns_and_b32 s%d, s%d, 1" % (S_E, S_R, S_GRP, S_R, S_GRP, S_GRP))
    rv = g.v(4)
    for q in range(4):
        g("v_add_u32 v%d, %d, v%d\nv_xor_b32 v%d, v%d, v%d\nv_lshlrev_b32 v%d, 4, v%d\nv_lshl_add_u32 v%d, v%d, 10, v%d" % (vA, 4 * q, Gq, rv + q, vA, N, rv + q, rv + q, rv + q, vA, rv + q))
    g("s_lshl_b32 s%d, s%d, 19\ns_lshl_b32 s%d, s%d, 16\ns_add_u32 s%d, s%d, s%d\ns_lshl_b32 s%d, s%d, 8\ns_add_u32 s%d, s%d, s%d" % (T0, S_S, T1, S_E, T0, T0, T1, T1, S_W, T0, T0, T1))
    g("s_lshl_b32 s%d, s%d, 14" % (T1, S_W))
    g("s_waitcnt lgkmcnt(0)")
    g.stamp(1)
    epoch_load(g)
    g.srd(SRD_A, P_CKV, 8388608)
    g("s_barrier")
    if o["rowwait"] == "epoch": g("s_waitcnt vmcnt(0)")
    g.stamp(2)
    for tau in range(4):
        g("s_xor_b32 s%d, s%d, %d\ns_lshl_b32 s%d, s%d, 14\ns_add_u32 s%d, s%d, s%d" % (T2, S_W, (tau + 1) & 3, T2, T2, T2, T2, T0))
        for q in range(4):
            g("s_mov_b32 m0, s%d\ns_add_u32 s%d, s%d, 1024" % (T1, T1, T1))
            g("buffer_load_dwordx4 v%d, %s, s%d offen lds" % (rv + q, sr(SRD_A, 4), T2))
    g.stamp(3)
    g("s_waitcnt vmcnt(16)")
    epoch_ready(g)
    ra, qa_r, qa_w, ex_r = g.v(4), g.v(4), g.v(8), g.v(3)
    g("s_lshl_b32 s%d, s%d, 14\ns_lshl_b32 s%d, s%d, 12\ns_add_u32 s%d, s%d, %d" % (T0, S_W, T1, S_W, T1, T1, QA))
    for ks in range(4):
        g("v_add_u32 v%d, %d, v%d\nv_xor_b32 v%d, v%d, v%d\nv_lshlrev_b32 v%d, 4, v%d\nv_lshl_add_u32 v%d, v%d, 8, v%d" % (vA, 4 * ks, Gq, vA, vA, N, vA, vA, vA, N, vA))
        g("v_add_u32 v%d, s%d, v%d\nv_add_u32 v%d, s%d, v%d" % (ra + ks, T0, vA, qa_r + ks, T1, vA))
    vG2, vL16, vEx = g.v(), g.v(), g.v()
    g("v_lshrrev_b32 v%d, 5, v%d\nv_and_b32 v%d, 31, v%d\nv_lshlrev_b32 v%d, 4, v%d\nv_lshl_add_u32 v%d, v%d, 11, v%d" % (vA, L, vB, L, vG2, vB, vG2, vA, vG2))
    g("v_lshrrev_b32 v%d, 1, v%d\nv_xor_b32 v%d, v%d, v%d\nv_lshlrev_b32 v%d, 4, v%d\nv_lshl_add_u32 v%d, v%d, 8, v%d" % (vB, vB, vB, vB, vA, vB, vB, vB, vA, vB))
    g("v_and_b32 v%d, 1, v%d\nv_lshl_add_u32 v%d, v%d, 3, v%d\nv_add_u32 v%d, s%d, v%d" % (vA, L, vB, vA, vB, vB, T1, vB))
    for k in range(8): g("v_xor_b32 v%d, %d, v%d" % (qa_w + k, 32 * k, vB))
    g("v_lshlrev_b32 v%d, 4, v%d\nv_add_u32 v%d, s%d, v%d" % (vL16, L, vEx, T1, vL16))
    for tau in range(3): g("v_xor_b32 v%d, %d, v%d" % (ex_r + tau, 4096 * (tau + 1), vEx))
    g("s_lshl_b32 s%d, s%d, 15\ns_lshl_b32 s%d, s%d, 9\ns_add_u32 s%d, s%d, s%d\ns_add_u32 s%d, s%d, 0x%x" % (T2, S_GRP, T0, S_W, T2, T2, T0, T2, T2, RQA))
    gq = g.v(32, 4); opA = g.v(64, 4); opB = g.v(16, 4); acc = g.v(20, 4); gr = g.v(4, 4)
    wait_flags(g, F_QPUB, n=1, sleep=1)
    g.stamp(4)
    def i2():
        g("s_mov_b32 s%d, s%d" % (T3, T2))
        for k in range(8):
            g("buffer_load_dwordx4 %s, v%d, %s, s%d offen sc1" % (vr(gq + 4 * k, 4), vG2, sr(SRD_WS, 4), T3))
            if k < 7: g("s_add_u32 s%d, s%d, 4096" % (T3, T3))
    def b2():
        set_flag(g, F_G2)
        g("s_waitcnt vmcnt(8)")
        g.stamp(5)
        for tau in range(4):
            for ks in range(4):
                g("ds_read_b128 %s, v%d offset:%d" % (vr(opA + 16 * tau + 4 * ks, 4), ra + ks, 4096 * tau))
    gather(g, "h2", i2, [gq + 4 * k + 3 for k in range(8)], False, between=b2, sleep=o["h2sleep"])
    g.stamp(6)
    for k in range(8): g("ds_write_b64 v%d, %s offset:%d" % (qa_w + k, vr(gq + 4 * k, 2), 512 * k))
    for ks in range(4): g("ds_read_b128 %s, v%d" % (vr(opB + 4 * ks, 4), qa_r + ks))
    g("s_lshl_b32 s%d, s%d, 1\ns_add_u32 s%d, s%d, s%d\ns_lshl_b32 s%d, s%d, 15\ns_add_u32 s%d, s%d, 0x%x" % (T2, S_S, T2, T2, S_GRP, T2, T2, T2, T2, RP))
    g("s_lshl_b32 s%d, s%d, 12\ns_lshl_b32 s%d, s%d, 10\ns_add_u32 s%d, s%d, s%d\ns_add_u32 s%d, s%d, s%d" % (T0, S_E, T1, S_W, T0, T0, T1, T0, T0, T2))
    g("s_lshl_b32 s%d, s%d, 13\ns_add_u32 s%d, s%d, s%d\ns_add_u32 s%d, s%d, 4096" % (T1, S_W, T2, T2, T1, T3, T2))
    g("v_mov_b32 v%d, s%d" % (gr + 3, S_TAG))
    g("s_waitcnt lgkmcnt(0)")
    for tau in range(4):
        for ks in range(4):
            mfma(g, acc + 4 * tau, opA + 16 * tau + 4 * ks, opB + 4 * ks, None if ks == 0 else acc + 4 * tau)
        if tau >= 2: g("ds_write_b128 v%d, %s offset:%d" % (vEx, vr(acc + 4 * (tau - 2), 4), 1024 * (tau - 2)))
    g("ds_write_b128 v%d, %s offset:2048" % (vEx, vr(acc + 8, 4)))
    set_flag(g, F_S)
    def rs():
        for tau in range(3): g("ds_read_b128 %s, v%d offset:%d" % (vr(opB + 4 * tau, 4), ex_r + tau, 1024 * tau))
    wait_flags(g, F_S, extra=rs)
    sc = acc + 12
    for i in range(4):
        g("v_add_f32 v%d, v%d, v%d\nv_add_f32 v%d, v%d, v%d" % (sc + i, sc + i, opB + i, opB + 4 + i, opB + 4 + i, opB + 8 + i))
    for i in range(4): g("v_add_f32 v%d, v%d, v%d" % (sc + i, sc + i, opB + 4 + i))
    g("v_max3_f32 v%d, v%d, v%d, v%d\nv_max_f32 v%d, v%d, v%d\nv_ceil_f32 v%d, v%d" % (gr + 2, sc, sc + 1, sc + 2, gr + 2, gr + 2, sc + 3, gr + 2, gr + 2))
    for i in range(4): g("v_sub_f32 v%d, v%d, v%d" % (sc + i, sc + i, gr + 2))
    for i in range(4): g("v_exp_f32 v%d, v%d" % (sc + i, sc + i))
    g("v_cvt_pk_bf16_f32 v%d, v%d, v%d\nv_cvt_pk_bf16_f32 v%d, v%d, v%d" % (gr, sc, sc + 1, gr + 1, sc + 2, sc + 3))
    g("buffer_store_dwordx4 %s, v%d, %s, s%d offen sc1" % (vr(gr, 4), vL16, sr(SRD_WS, 4), T0))
    g.stamp(7)
    ca = ra
    g("s_lshl_b32 s%d, s%d, 14\ns_add_u32 s%d, s%d, %d" % (T0, S_W, T0, T0, COL))
    g("v_lshrrev_b32 v%d, 2, v%d\nv_lshlrev_b32 v%d, 7, v%d\nv_and_b32 v%d, 3, v%d\nv_lshl_add_u32 v%d, v%d, 3, v%d" % (vA, L, vA, vA, vB, L, vA, vB, vA))
    g("v_lshrrev_b32 v%d, 3, v%d\nv_and_b32 v%d, 3, v%d\nv_lshl_add_u32 v%d, v%d, 5, v%d\nv_add_u32 v%d, s%d, v%d" % (vB, L, vB, vB, vA, vB, vA, vA, T0, vA))
    for ct in range(4): g("v_xor_b32 v%d, %d, v%d" % (ca + ct, 32 * ct, vA))
    ow = qa_w; vOr, vMw, vMr, vOs = qa_w + 4, qa_w + 5, qa_w + 6, qa_w + 7
    g("s_lshl_b32 s%d, s%d, 12\ns_add_u32 s%d, s%d, %d" % (T0, S_W, T0, T0, OX))
    g("v_xor_b32 v%d, v%d, v%d\nv_lshlrev_b32 v%d, 4, v%d\nv_lshl_add_u32 v%d, v%d, 8, v%d\nv_add_u32 v%d, s%d, v%d" % (vA, N, Gq, vA, vA, vA, Gq, vA, vA, T0, vA))
    for ct in range(4): g("v_xor_b32 v%d, %d, v%d" % (ow + ct, 64 * ct, vA))
    g("s_lshl_b32 s%d, s%d, 2\nv_add_u32 v%d, s%d, v%d" % (T0, S_W, vB, T0, Gq))
    g("v_xor_b32 v%d, v%d, v%d\nv_lshlrev_b32 v%d, 4, v%d\nv_lshl_add_u32 v%d, v%d, 8, v%d\nv_add_u32 v%d, %d, v%d" % (vA, vB, N, vA, vA, vA, N, vA, vOr, OX, vA))
    g("v_lshlrev_b32 v%d, 5, v%d\nv_add_u32 v%d, %d, v%d" % (vA, vB, vMr, ML, vA))
    g("s_lshl_b32 s%d, s%d, 3\ns_add_u32 s%d, s%d, %d\nv_lshlrev_b32 v%d, 5, v%d\nv_add_u32 v%d, s%d, v%d" % (T0, S_W, T0, T0, ML, vA, N, vMw, T0, vA))
    g("v_lshlrev_b32 v%d, 15, v%d\nv_lshl_add_u32 v%d, v%d, 4, v%d" % (vA, vB, vOs, N, vA))
    ones = g.v(4, 4)
    for i in range(4): g("v_mov_b32 v%d, 0x3f803f80" % (ones + i))
    g("s_waitcnt vmcnt(0)")
    g.stamp(8)
    def ip():
        for T in range(8):
            g("buffer_load_dwordx4 %s, v%d, %s, s%d offen offset:%d sc1" % (vr(gq + 4 * T, 4), vL16, sr(SRD_WS, 4), T2 if T < 4 else T3, 1024 * (T & 3)))
    def bp():
        wait_flags(g, F_COL)
        g.stamp(9)
        for ks in range(4):
            for ct in range(4):
                r = opA + 16 * ks + 4 * ct
                g("ds_read_b64_tr_b16 %s, v%d offset:%d" % (vr(r, 2), ca + ct, 4096 * ks))
                g("ds_read_b64_tr_b16 %s, v%d offset:%d" % (vr(r + 2, 2), ca + ct, 4096 * ks + 2048))
    gather(g, "hp", ip, [gq + 4 * T + 3 for T in range(8)], False, between=bp)
    set_flag(g, F_HP)
    g.stamp(10)
    mx, t1 = g.v(2), g.v()
    e = lambda T: gq + 4 * T + 2
    g("v_max3_f32 v%d, v%d, v%d, v%d\nv_max3_f32 v%d, v%d, v%d, v%d" % (mx, e(0), e(1), e(2), t1, e(3), e(4), e(5)))
    g("v_max3_f32 v%d, v%d, v%d, v%d\nv_max_f32 v%d, v%d, v%d" % (mx, mx, e(6), e(7), mx, mx, t1))
    rows_red(g, mx, t1, "v_max_f32")
    def scaleP(ks):
        for T in (2 * ks, 2 * ks + 1):
            g("v_sub_f32 v%d, v%d, v%d" % (e(T), mx, e(T)))
            g("v_cvt_pk_u8_f32 v%d, v%d, 0, 0" % (e(T), e(T)))
            g("v_mul_u32_u24 v%d, 0x800080, v%d" % (e(T), e(T)))
            for i in range(2):
                g("v_pk_sub_u16 v%d, v%d, v%d clamp" % (opB + 4 * ks + 2 * (T & 1) + i, gq + 4 * T + i, e(T)))
    scaleP(0)
    g("s_waitcnt lgkmcnt(0)")
    for ks in range(4):
        for ct in range(4):
            mfma(g, acc + 4 * ct, opA + 16 * ks + 4 * ct, opB + 4 * ks, None if ks == 0 else acc + 4 * ct)
        mfma(g, acc + 16, ones, opB + 4 * ks, None if ks == 0 else acc + 16)
        if ks < 3: scaleP(ks + 1)
    g("s_lshl_b32 s%d, s%d, 19\ns_lshl_b32 s%d, s%d, 12\ns_add_u32 s%d, s%d, s%d\ns_lshl_b32 s%d, s%d, 8\ns_add_u32 s%d, s%d, s%d\ns_add_u32 s%d, s%d, 0x%x" % (T2, S_GRP, T0, S_E, T2, T2, T0, T0, S_S, T2, T2, T0, T2, T2, RO))
    for ct in range(4): g("ds_write_b128 v%d, %s offset:%d" % (ow + ct, vr(acc + 4 * ct, 4), 1024 * ct))
    g("v_mov_b32 v%d, v%d\nds_write_b64 v%d, %s" % (mx + 1, acc + 16, vMw, vr(mx, 2)))
    set_flag(g, F_O)
    ml = gq; op = gq + 8
    def ro():
        g("ds_read_b128 %s, v%d\nds_read_b128 %s, v%d offset:16" % (vr(ml, 4), vMr, vr(ml + 4, 4), vMr))
        for v in range(4): g("ds_read_b128 %s, v%d offset:%d" % (vr(op + 4 * v, 4), vOr, 4096 * v))
    wait_flags(g, F_O, extra=ro)
    g("v_max3_f32 v%d, v%d, v%d, v%d\nv_max_f32 v%d, v%d, v%d" % (mx, ml, ml + 2, ml + 4, mx, mx, ml + 6))
    for v in range(4): g("v_sub_f32 v%d, v%d, v%d" % (ml + 2 * v, ml + 2 * v, mx))
    for v in range(4): g("v_exp_f32 v%d, v%d" % (ml + 2 * v, ml + 2 * v))
    g("v_and_b32 v%d, 1, v%d\nv_cmp_eq_u32 vcc, 1, v%d" % (t1, N, t1))
    for i in range(4): g("v_mul_f32 v%d, v%d, v%d" % (op + i, ml, op + i))
    g("v_mul_f32 v%d, v%d, v%d" % (t1, ml, ml + 1))
    for v in range(1, 4):
        for i in range(4): g("v_fmac_f32 v%d, v%d, v%d" % (op + i, ml + 2 * v, op + 4 * v + i))
        g("v_fmac_f32 v%d, v%d, v%d" % (t1, ml + 2 * v, ml + 2 * v + 1))
    g("v_cvt_pk_bf16_f32 v%d, v%d, v%d\nv_cvt_pk_bf16_f32 v%d, v%d, v%d" % (gr, op, op + 1, gr + 1, op + 2, op + 3))
    g("v_cndmask_b32 v%d, v%d, v%d, vcc" % (gr + 2, mx, t1))
    g("buffer_store_dwordx4 %s, v%d, %s, s%d offen sc1" % (vr(gr, 4), vOs, sr(SRD_WS, 4), T2))
    g.stamp(11)
    g("s_waitcnt vmcnt(0)")
    set_flag(g, F_OPUB)
    g.stamp(12)
    fin, done = g.lab("fin"), g.lab("adone")
    g("s_cmp_eq_u32 s%d, 0\ns_cbranch_scc1 %s" % (S_W, fin))
    g("s_cmp_lg_u32 s%d, 1\ns_cbranch_scc1 L_exit" % S_W)
    mlp_ids(g)
    g("s_cbranch_scc0 L_exit")
    g.srd(SRD_B, P_W2, 1376 * 1024)
    g.srd(SRD_C, P_B1, 2752)
    g("s_mov_b32 s%d, 0x05040100\ns_mov_b32 s%d, 0x07060302" % (S_PLO, S_PHI2))
    g("s_lshl_b32 s%d, s%d, 2\ns_add_u32 s%d, s%d, s%d" % (S_J, S_PHI, S_J, S_J, S_MQ))
    g("s_lshl_b32 s%d, s%d, 9\ns_lshl_b32 s%d, s%d, 5\ns_add_u32 s%d, s%d, s%d\ns_add_u32 s%d, s%d, 0x%x" % (T2, S_PHI, T0, S_MQ, T2, T2, T0, T2, T2, RH))
    g("v_bfe_u32 v%d, v%d, 1, 2\nv_lshlrev_b32 v%d, 7, v%d\nv_and_b32 v%d, 1, v%d\nv_lshl_add_u32 v%d, v%d, 4, v%d\nv_lshlrev_b32 v%d, 3, v%d" % (vA, L, vA, vA, vB, L, vA, vB, vA, vB, vB))
    hq = gq; bb = gq + 4; w2 = opA; w2t = opA + 32
    def ih(): g("buffer_load_dwordx4 %s, v%d, %s, s%d offen sc1" % (vr(hq, 4), vA, sr(SRD_WS, 4), T2))
    def bh():
        g("s_lshl_b32 s%d, s%d, 4" % (T0, S_J))
        g("buffer_load_dwordx2 %s, v%d, %s, s%d offen" % (vr(bb, 2), vB, sr(SRD_C, 4), T0))
        g("s_lshl_b32 s%d, s%d, 13\ns_add_u32 s%d, s%d, 4096" % (T0, S_J, T1, T0))
        for jj in range(8):
            g("buffer_load_dwordx4 %s, v%d, %s, s%d offen offset:%d" % (vr(w2 + 4 * jj, 4), vL16, sr(SRD_B, 4), T0 if jj < 4 else T1, 1024 * (jj & 3)))
    gather(g, "hh", ih, [hq + i for i in range(4)], True, between=bh)
    for i in range(4): g("v_and_b32 v%d, s%d, v%d" % (hq + i, S_MASK, hq + i))
    for k in (2, 4):
        for i in range(4): g("v_add_f32_dpp v%d, v%d, v%d row_ror:%d %s" % (hq + i, hq + i, hq + i, k, DPPM))
    bf = gq + 8; u = gq + 12
    unpack(g, bf, bb, 2)
    c1 = -2 * 0.7978845608028654 * LOG2E
    for i in range(4):
        rbf(g, hq + i)
        g("v_add_f32 v%d, v%d, v%d" % (hq + i, hq + i, bf + i)); rbf(g, hq + i)
        g("v_mul_f32 v%d, v%d, v%d\nv_mul_f32 v%d, 0x%x, v%d\nv_add_f32 v%d, 0x%x, v%d\nv_mul_f32 v%d, v%d, v%d" % (u + i, hq + i, hq + i, u + i, f2u(c1 * 0.044715), u + i, u + i, f2u(c1), u + i, u + i, u + i, hq + i))
        g("v_exp_f32 v%d, v%d\nv_add_f32 v%d, 1.0, v%d\nv_rcp_f32 v%d, v%d\nv_mul_f32 v%d, v%d, v%d" % (u + i, u + i, u + i, u + i, u + i, u + i, hq + i, hq + i, u + i))
    g("v_cvt_pk_bf16_f32 v%d, v%d, v%d\nv_cvt_pk_bf16_f32 v%d, v%d, v%d" % (u, hq, hq + 1, u + 1, hq + 2, hq + 3))
    transpose8(g, w2, w2t)
    g("v_readlane_b32 s%d, v%d, 0\nv_readlane_b32 s%d, v%d, 0\nv_readlane_b32 s%d, v%d, 1\nv_readlane_b32 s%d, v%d, 1" % (T0, u, T1, u + 1, T2, u, T3, u + 1))
    ta = gq + 16
    for p in range(4):
        for c in range(8):
            g("v_dot2_f32_bf16 v%d, v%d, s%d, %s" % (ta + c, w2t + 4 * c + p, T0 + p, "0" if p == 0 else "v%d" % (ta + c)))
    g("v_lshlrev_b32 v%d, 4, v%d\nv_lshl_add_u32 v%d, v%d, 9, v%d" % (vA, N, vA, Gq, vA))
    g("s_lshl_b32 s%d, s%d, 11\ns_add_u32 s%d, s%d, 0x%x" % (T0, S_J, T0, T0, RT))
    tagbytes(g, ta, [ta + c for c in range(8)])
    g("buffer_store_dwordx4 %s, v%d, %s, s%d offen sc1" % (vr(ta, 4), vA, sr(SRD_WS, 4), T0))
    g("buffer_store_dwordx4 %s, v%d, %s, s%d offen offset:256 sc1" % (vr(ta + 4, 4), vA, sr(SRD_WS, 4), T0))
    g("s_endpgm")
    g("%s:" % fin)
    g("s_cmp_ge_u32 s%d, 16\ns_cbranch_scc1 %s" % (S_R, done))
    g.srd(SRD_A, P_X, 1024)
    g.srd(SRD_B, P_B2, 1024)
    g.srd(SRD_C, P_OUT, 1024)
    g("s_lshr_b32 s%d, s%d, 1\ns_lshl_b32 s%d, s%d, 8\ns_lshl_b32 s%d, s%d, 4\ns_add_u32 s%d, s%d, s%d" % (T0, S_X, T0, T0, T1, S_R, T0, T0, T1))
    g("s_and_b32 s%d, s%d, 1\ns_lshl_b32 s%d, s%d, 3\ns_add_u32 s%d, s%d, s%d" % (T1, S_X, T1, T1, S_J, T0, T1))
    g("v_and_b32 v%d, 1, v%d\nv_lshlrev_b32 v%d, 2, v%d\nv_and_b32 v%d, 2, v%d\nv_add_u32 v%d, v%d, v%d" % (vA, Gq, vA, vA, vB, Gq, vB, vB, vA))
    xv, bv = mx, mx + 1
    g("buffer_load_ushort v%d, v%d, %s, s%d offen\nbuffer_load_ushort v%d, v%d, %s, s%d offen" % (xv, vB, sr(SRD_A, 4), S_J, bv, vB, sr(SRD_B, 4), S_J))
    g("s_lshl_b32 s%d, s%d, 8\ns_lshl_b32 s%d, s%d, 4\ns_add_u32 s%d, s%d, s%d" % (T0, S_X, T1, S_R, T0, T0, T1))
    g("v_lshlrev_b32 v%d, 11, v%d\nv_add_u32 v%d, s%d, v%d" % (vA, L, vA, T0, vA))
    ga = qa_w
    for k in range(4): g("v_add_u32 v%d, 0x%x, v%d" % (ga + k, RS + k * 64 * 2048, vA))
    for k in range(3): g("v_add_u32 v%d, 0x%x, v%d" % (ga + 4 + k, RT + k * 64 * 2048, vA))
    g("v_cmp_gt_u32 vcc, 44, v%d\nv_cndmask_b32 v%d, v%d, v%d, vcc\nv_cndmask_b32 v%d, 0, v%d, vcc" % (L, ga + 6, ga + 5, ga + 6, t1, g.vMaskV))
    sv, tv = gq, gq + 16
    wait_flags(g, F_SPUB, sleep=1)
    g.stamp(13)
    def i5():
        for k in range(3): g("buffer_load_dwordx4 %s, v%d, %s, 0 offen sc1" % (vr(tv + 4 * k, 4), ga + 4 + k, sr(SRD_WS, 4)))
        for k in range(4): g("buffer_load_dwordx4 %s, v%d, %s, 0 offen sc1" % (vr(sv + 4 * k, 4), ga + k, sr(SRD_WS, 4)))
    gather(g, "h5", i5, [gq + i for i in range(28)], True)
    g.stamp(14)
    for i in range(24): g("v_and_b32 v%d, s%d, v%d" % (gq + i, S_MASK, gq + i))
    for i in range(4): g("v_and_b32 v%d, v%d, v%d" % (tv + 8 + i, t1, tv + 8 + i))
    for i in range(4):
        g("v_add_f32 v%d, v%d, v%d\nv_add_f32 v%d, v%d, v%d" % (tv + i, tv + i, tv + 4 + i, sv + i, sv + i, sv + 4 + i))
        g("v_add_f32 v%d, v%d, v%d\nv_add_f32 v%d, v%d, v%d" % (tv + i, tv + i, tv + 8 + i, sv + 8 + i, sv + 8 + i, sv + 12 + i))
    for i in range(4): g("v_add_f32 v%d, v%d, v%d" % (sv + i, sv + i, sv + 8 + i))
    reduce4(g, tv, t1); reduce4(g, sv, t1)
    rbf(g, tv); rbf(g, sv)
    g("v_lshlrev_b32 v%d, 16, v%d\nv_lshlrev_b32 v%d, 16, v%d\nv_add_f32 v%d, v%d, v%d" % (xv, xv, bv, bv, tv, tv, bv)); rbf(g, tv)
    g("v_mul_f32 v%d, 0x%x, v%d\nv_exp_f32 v%d, v%d\nv_add_f32 v%d, 1.0, v%d\nv_rcp_f32 v%d, v%d\nv_mul_f32 v%d, v%d, v%d" % (t1, f2u(-LOG2E), tv, t1, t1, t1, t1, t1, t1, tv, tv, t1)); rbf(g, tv)
    g("v_mul_f32 v%d, v%d, v%d" % (sv, sv, tv)); rbf(g, sv)
    g("v_add_f32 v%d, v%d, v%d\nv_cvt_pk_bf16_f32 v%d, v%d, v%d" % (sv, sv, xv, sv, sv, sv))
    g("s_mov_b32 exec_lo, 0x00010001\ns_mov_b32 exec_hi, 0x00010001")
    g("buffer_store_short v%d, v%d, %s, s%d offen" % (sv, vB, sr(SRD_C, 4), S_J))
    g("s_mov_b64 exec, 1")
    noep = g.lab("noep")
    g("s_cmp_lg_u32 s%d, 0\ns_cbranch_scc1 %s" % (S_B, noep))
    g("buffer_store_dword v%d, v%d, %s, 0 offen sc1" % (gr + 3, g.vZero, sr(SRD_WS, 4)))
    g("%s:" % noep)
    g("s_mov_b64 exec, -1")
    g.stamp(15)
    g("%s:" % done)
    diag_out(g, 16, 256)
    g("s_endpgm")

DEFAULT = dict(diag=False, wuk="early", rowwait="none", h2sleep=2)

def build(path, **kw):
    o = dict(DEFAULT); o.update(kw)
    g = G(o)
    a = g.a
    kernel_begin(a, KN)
    g.stamp(0)
    g("s_cmp_ge_u32 s2, 256\ns_cbranch_scc1 L_exit")
    g("s_load_dwordx16 s[8:23], s[0:1], 0\ns_load_dwordx8 s[24:31], s[0:1], 64\ns_load_dwordx4 s[32:35], s[0:1], 96")
    g.vL = g.v(); g.vN = g.v(); g.vG = g.v(); g.vFL = g.v(); g.vFLw = g.v(); g.vOne = g.v(); g.vTagB = g.v(); g.vZero = g.v()
    g.vT = g.v(4, 4); g.vMaskV = g.v()
    g("v_lshrrev_b32 v%d, 6, v0\nv_readfirstlane_b32 s%d, v%d" % (g.vN, S_WAVE, g.vN))
    g("v_and_b32 v0, 63, v0\nv_and_b32 v%d, 15, v0\nv_lshrrev_b32 v%d, 4, v0" % (g.vN, g.vG))
    g("s_and_b32 s%d, s2, 7\ns_lshr_b32 s%d, s2, 3\ns_mov_b32 s%d, 0x40000\ns_mov_b32 s%d, 0xffffff00" % (S_X, S_R, S_TO, S_MASK))
    g("s_and_b32 s%d, s%d, 3\ns_lshl_b32 s%d, s%d, 2\ns_add_u32 s%d, s%d, %d" % (S_W, S_WAVE, T0, S_W, T0, T0, FL))
    g("v_mov_b32 v%d, %d\nv_mov_b32 v%d, s%d\nv_mov_b32 v%d, 1\nv_mov_b32 v%d, 0\nv_mov_b32 v%d, s%d" % (g.vFL, FL, g.vFLw, T0, g.vOne, g.vZero, g.vMaskV, S_MASK))
    if o["diag"]:
        for s in range(1, 16): g("s_mov_b64 s[%d:%d], 0" % (64 + 2 * s, 65 + 2 * s))
    g("s_cmp_ge_u32 s%d, 4\ns_cbranch_scc1 L_att" % S_WAVE)
    base = g.nv
    head(g)
    g.nv = base
    g("L_att:")
    att(g)
    g("L_exit:\ns_endpgm\nL_codeend:")
    body = hz.fix(a.lines)
    out = Asm()
    out.lines += open("hdr.txt").read().rstrip("\n").split("\n")
    header(out, ["grid=(256,1,1) block=(512,1,1) lds=%d" % LDS_BYTES])
    out.lines += body
    nv = (g.maxv + 7) // 8 * 8
    descriptors(out, [(KN, nv, 102, nv)])
    open(path, "w").write(out.text())
    return g.maxv

if __name__ == "__main__":
    print(build("k1.s"), build("k1d.s", diag=True))
    build("k1d_x.s", diag=True, wuk="x", rowwait="epoch")
    build("k1d_ln.s", diag=True, wuk="ln", rowwait="epoch")
```
